```python
import torch

def _softmax(x, axis=-1):
    return torch.softmax(x, dim=axis)
def _gelu(x):
    return torch.nn.functional.gelu(x, approximate="tanh")
def _silu(x):
    return torch.nn.functional.silu(x)
def _sigmoid(x):
    return torch.sigmoid(x)
def _layernorm(x, axis=-1, eps=1e-5):
    m = x.mean(dim=axis, keepdim=True)
    v = x.var(dim=axis, keepdim=True, unbiased=False)
    return (x - m) / torch.sqrt(v + eps)
def _scatter_add(tgt, idx, src, axis=0):
    return tgt.clone().index_add_(axis, idx, src)
def _segment_sum(src, seg, n):
    out = torch.zeros((n,) + src.shape[1:], dtype=src.dtype)
    return out.index_add_(0, seg, src)
def _pad(x, pw):
    flat = tuple(v for pair in reversed(pw) for v in pair)
    return torch.nn.functional.pad(x, flat)

kernel_name = 'sequential_preLN__gqa_block_cached__swiglu_ffn__decode'

def setup_inputs():

    _w = (lambda a: (lambda t: t.to(torch.bfloat16) if t.is_floating_point() else t)(torch.as_tensor(a)))
    def _A_setup():
        B, Sq, D = 4, 1, 512
        Hq, Hkv, Sk, Dh = 32, 8, 4096, 128
        assert Hq % Hkv == 0, (Hq, Hkv)
        return {
            "x": _w((lambda *s: torch.randn(*s, dtype=torch.bfloat16) * 0.05)(B, Sq, D)),
            "k_cache": _w((lambda *s: torch.randn(*s, dtype=torch.bfloat16) * 3.2)(B, Hkv, Sk, Dh)),
            "v_cache": _w((lambda *s: torch.randn(*s, dtype=torch.bfloat16) * 0.4)(B, Hkv, Sk, Dh)),
            "wq": _w((lambda *s: torch.randn(*s, dtype=torch.bfloat16) * 3.2)(D, Hq * Dh) * (D ** -0.5)),
            "wo": _w((lambda *s: torch.randn(*s, dtype=torch.bfloat16) * 0.4)(Hq * Dh, D) * ((Hq * Dh) ** -0.5)),
        }
    _A_in = _A_setup()

    def _B_setup():
        B, S, D, F = 4, 1, 512, 1792
        return {
            "x": _w((lambda *s: torch.randn(*s, dtype=torch.bfloat16) * 0.05)(B, S, D)),
            "w_gate": _w((lambda *s: torch.randn(*s, dtype=torch.bfloat16) * 0.05)(D, F)),
            "w_up": _w((lambda *s: torch.randn(*s, dtype=torch.bfloat16) * 0.05)(D, F)),
            "w_down": _w((lambda *s: torch.randn(*s, dtype=torch.bfloat16) * 0.05)(F, D)),
        }
    _B_in = _B_setup()

    return {
        "A_x": _A_in["x"],
        "A_k_cache": _A_in["k_cache"],
        "A_v_cache": _A_in["v_cache"],
        "A_wq": _A_in["wq"],
        "A_wo": _A_in["wo"],
        "B_x": _B_in["x"],
        "B_w_gate": _B_in["w_gate"],
        "B_w_up": _B_in["w_up"],
        "B_w_down": _B_in["w_down"],
    }

def reference(A_x, A_k_cache, A_v_cache, A_wq, A_wo, B_x, B_w_gate, B_w_up, B_w_down):
    def _A_ref(x, k_cache, v_cache, wq, wo):
        B, Sq, D = x.shape
        Hq, Dh = 32, 128
        Hkv = k_cache.shape[1]
        rep = Hq // Hkv
        q = (lambda x, *d: x.permute(*d))((x @ wq).reshape(B, Sq, Hq, Dh), 0, 2, 1, 3)
        k = (lambda x, n, axis: torch.repeat_interleave(x, n, dim=axis))(k_cache, rep, axis=1)
        v = (lambda x, n, axis: torch.repeat_interleave(x, n, dim=axis))(v_cache, rep, axis=1)
        scores = torch.einsum("bhqd,bhkd->bhqk", q, k) * (Dh ** -0.5)
        p = _softmax(scores, axis=-1)
        o = torch.einsum("bhqk,bhkd->bhqd", p, v)
        return (lambda x, *d: x.permute(*d))(o, 0, 2, 1, 3).reshape(B, Sq, Hq * Dh) @ wo

    def _B_ref(x, w_gate, w_up, w_down):
        g = _silu(x @ w_gate)
        u = x @ w_up
        return (g * u) @ w_down

    x = A_x
    h = x + _A_ref(_layernorm(x, axis=-1), A_k_cache, A_v_cache, A_wq, A_wo)
    h2 = h + _B_ref(_layernorm(h, axis=-1), B_w_gate, B_w_up, B_w_down)
    return h2
```

```python
import sys, math, struct
KN = "sequential_preLN__gqa_block_cached__swiglu_ffn__decode_kernel"
def f2u(x): return struct.unpack("<I", struct.pack("<f", x))[0]

class G:
    def __init__(self, stamps=False):
        self.L = []; self.stamps = stamps
    def __call__(self, s):
        for ln in s.strip("\n").split("\n"):
            if ln.strip(): self.L.append("    " + ln.strip())
    def label(self, n): self.L.append(n + ":")
    def stamp(self, i):
        if self.stamps: self(f"s_memrealtime s[{72+2*i}:{73+2*i}]")
    def text(self): return "\n".join(self.L) + "\n"

WS_EPOCH = 0x0
WS_READY = 0x1000
WS_QG    = 0x10000
WS_ST    = 0x20000
WS_OP    = 0x40000
WS_AP    = 0x80000
WS_DP    = 0x100000
WS_STAMP = 0xF000000
L_ST  = 0
L_OB  = 256
L_WT  = 0
L_HT  = 1024
L_ACT = L_HT + 8*768
L_R   = L_ACT + 512
L_W   = L_R + 20480
L_END = L_W + 8*16384
LDS_BYTES = (L_END + 255)//256*256
assert LDS_BYTES <= 160*1024

sK="s[8:11]"; sV="s[12:15]"; sWS="s[16:19]"; sWA="s[20:23]"; sWB="s[24:27]"; sXS="s[28:31]"; sOUT="s[32:35]"
W="s36"; X="s37"; R="s38"; T="s39"; KVOFF="s40"; TMP="s41"; TMP2="s42"; CNT="s43"; SLOT="s44"; B_="s45"; TMP3="s46"; OPT="s47"
NS=R; LW="s40"; JF="s44"; DONE="s45"
POLLMAX = 200000
NU = 22
def r4(b): return f"v[{b}:{b+3}]"
def r2(b): return f"v[{b}:{b+1}]"
DPPF = "row_mask:0xf bank_mask:0xf"

def build(stamps=False, pol="nt", wpol="nt", nv1=10):
    g = G(stamps)
    vL=1; vT0=2; vT1=3; vT2=4; vT3=5
    def pollcheck(lab_ok, lab_again):
        g(f"""
        s_add_u32 {CNT}, {CNT}, 1
        s_cmp_gt_u32 {CNT}, {POLLMAX}
        s_cbranch_scc1 {lab_ok}
        s_cbranch_vccnz {lab_again}
        """)
    def sentinel_check(base, n, tmp, dst="vcc"):
        g(f"v_max3_u32 v{tmp}, v{base}, v{base+1}, v{base+2}")
        i = 3
        while i + 1 < n:
            g(f"v_max3_u32 v{tmp}, v{tmp}, v{base+i}, v{base+i+1}"); i += 2
        if i < n: g(f"v_max_u32 v{tmp}, v{tmp}, v{base+i}")
        g(f"v_cmp_eq_u32 {dst}, -1, v{tmp}")
    def srd(d, lo, size):
        g(f"s_mov_b32 s{d}, s{lo}\ns_mov_b32 s{d+1}, s{lo+1}\ns_mov_b32 s{d+2}, {size:#x}\ns_mov_b32 s{d+3}, 0x20000")

    if stamps:
        for i in range(1, 14): g(f"s_mov_b64 s[{72+2*i}:{73+2*i}], 0")
    g.stamp(0)
    g(f"""
    s_cmp_ge_u32 s2, 256
    s_cbranch_scc1 L_end
    s_load_dwordx16 s[48:63], s[0:1], 0
    s_load_dwordx8 s[64:71], s[0:1], 64
    v_lshrrev_b32 v{vT0}, 6, v0
    v_and_b32 v{vL}, 63, v0
    s_and_b32 {X}, s2, 7
    v_readfirstlane_b32 {W}, v{vT0}
    s_lshr_b32 {R}, s2, 3
    v_lshrrev_b32 v{vT0}, 4, v{vL}
    v_bfe_u32 v{vT1}, v{vL}, 2, 2
    v_and_b32 v{vT2}, 3, v{vL}
    v_and_b32 v{vT3}, 15, v{vL}
    s_mov_b32 s18, 0x10000000
    s_mov_b32 s19, 0x20000
    s_cmp_lt_u32 {R}, 8
    s_cbranch_scc1 L_service
    """)
    vKO=6; vVO=7; vQO=8; vC=9; vM=10; vLS=11; vF=12
    vSEL=13
    vQ=18
    vO=22
    vS=30
    vQR=30
    vD=52
    vKK=68
    vVV=158
    NV_ATT = 246
    g(f"""
    s_sub_u32 {R}, {R}, 8
    s_mul_i32 {B_}, {R}, 43
    s_lshr_b32 {B_}, {B_}, 8
    s_mul_i32 {TMP}, {B_}, 6
    s_sub_u32 {TMP}, {R}, {TMP}
    s_mul_i32 {TMP2}, {W}, 6
    s_add_u32 {TMP}, {TMP}, {TMP2}
    s_min_u32 {TMP2}, {TMP}, 16
    s_mul_i32 {KVOFF}, {TMP}, 21
    s_add_u32 {KVOFF}, {KVOFF}, {TMP2}
    s_lshl_b32 {TMP2}, {B_}, 3
    s_or_b32 {TMP2}, {TMP2}, {X}
    s_lshl_b32 {TMP2}, {TMP2}, 10
    s_add_u32 {KVOFF}, {KVOFF}, {TMP2}
    s_lshl_b32 {KVOFF}, {KVOFF}, 10
    s_add_u32 {OPT}, {KVOFF}, {21*1024}
    s_cmp_lt_u32 {TMP}, 16
    s_cselect_b32 {OPT}, {OPT}, 0x40000000
    s_cselect_b32 s3, 0, 0xff800000
    s_mul_i32 {SLOT}, {X}, 24
    s_add_u32 {SLOT}, {SLOT}, {R}
    v_lshlrev_b32 v{vVO}, 4, v{vL}
    v_lshlrev_b32 v{vKO}, 6, v{vT0}
    v_lshl_add_u32 v{vKO}, v{vT1}, 8, v{vKO}
    v_lshl_add_u32 v{vKO}, v{vT2}, 4, v{vKO}
    s_mov_b32 s10, 0x2000000
    s_mov_b32 s11, 0x20000
    s_mov_b32 s14, 0x2000000
    s_mov_b32 s15, 0x20000
    s_waitcnt lgkmcnt(0)
    s_mov_b32 s8, s50
    s_mov_b32 s9, s51
    s_mov_b32 s12, s52
    s_mov_b32 s13, s53
    s_mov_b32 s16, s70
    s_mov_b32 s17, s71
    s_load_dword {T}, s[70:71], {WS_EPOCH}
    """)
    def kv_load(n, base, voff, sr, sreg):
        if n == 0:
            g(f"buffer_load_dwordx4 {r4(base)}, v{voff}, {sr}, {OPT} offen {pol}")
        else:
            m = n - 1
            if m % 4 == 0: g(f"s_add_u32 {sreg}, {KVOFF}, {m*1024}")
            g(f"buffer_load_dwordx4 {r4(base+4*n)}, v{voff}, {sr}, {sreg} offen offset:{(m%4)*1024} {pol}")
    for n in range(NU): kv_load(n, vKK+2, vKO, sK, TMP)
    g.stamp(1)
    g(f"""
    v_lshlrev_b32 v{vQO}, 7, v{vT0}
    v_lshl_add_u32 v{vQO}, v{vT1}, 9, v{vQO}
    v_lshl_add_u32 v{vQO}, v{vT2}, 5, v{vQO}
    s_lshl_b32 {TMP2}, {B_}, 14
    s_lshl_b32 {TMP3}, {X}, 11
    s_add_u32 {TMP2}, {TMP2}, {TMP3}
    s_add_u32 {TMP2}, {TMP2}, {WS_QG}
    """)
    def q_loads():
        g(f"buffer_load_dwordx4 {r4(vQR)}, v{vQO}, {sWS}, {TMP2} offen sc1")
        g(f"buffer_load_dwordx4 {r4(vQR+4)}, v{vQO}, {sWS}, {TMP2} offen offset:16 sc1")
    def q_check():
        g(f"""
        v_xor_b32 v{vD}, {T}, v{vQR+1}
        v_xor_b32 v{vD+1}, {T}, v{vQR+3}
        v_xor_b32 v{vD+2}, {T}, v{vQR+5}
        v_xor_b32 v{vD+3}, {T}, v{vQR+7}
        v_or_b32 v{vD}, v{vD}, v{vD+1}
        v_or3_b32 v{vD}, v{vD}, v{vD+2}, v{vD+3}
        v_cmp_ne_u32 vcc, 0, v{vD}
        v_mov_b32 v{vQ}, v{vQR}
        v_mov_b32 v{vQ+1}, v{vQR+2}
        v_mov_b32 v{vQ+2}, v{vQR+4}
        v_mov_b32 v{vQ+3}, v{vQR+6}
        """)
    q_loads()
    for n in range(nv1): kv_load(n, vVV, vVO, sV, TMP)
    cscale = (128 ** -0.5) * math.log2(math.e)
    g(f"""
    v_mov_b32 v{vC}, {f2u(cscale):#x}
    v_mov_b32 v{vD}, 0x0c0c0c0c
    v_mov_b32 v{vD+1}, 0x0c0c0100
    v_mov_b32 v{vD+2}, 0x01000c0c
    v_mov_b32 v{vD+3}, 0x0c0c0302
    v_mov_b32 v{vD+4}, 0x03020c0c
    v_cmp_eq_u32 s[4:5], 0, v{vT2}
    v_cmp_eq_u32 s[6:7], 1, v{vT2}
    s_nop 1
    v_cndmask_b32 v{vSEL}, v{vD}, v{vD+1}, s[4:5]
    v_cndmask_b32 v{vSEL}, v{vSEL}, v{vD+2}, s[6:7]
    v_cndmask_b32 v{vSEL+1}, v{vD}, v{vD+3}, s[4:5]
    v_cndmask_b32 v{vSEL+1}, v{vSEL+1}, v{vD+4}, s[6:7]
    v_cmp_eq_u32 s[4:5], 2, v{vT2}
    v_cmp_eq_u32 s[6:7], 3, v{vT2}
    s_nop 1
    v_cndmask_b32 v{vSEL+2}, v{vD}, v{vD+1}, s[4:5]
    v_cndmask_b32 v{vSEL+2}, v{vSEL+2}, v{vD+2}, s[6:7]
    v_cndmask_b32 v{vSEL+3}, v{vD}, v{vD+3}, s[4:5]
    v_cndmask_b32 v{vSEL+3}, v{vSEL+3}, v{vD+4}, s[6:7]
    s_waitcnt lgkmcnt(0)
    s_add_u32 {T}, {T}, 1
    s_mov_b32 {CNT}, 0
    s_waitcnt vmcnt({nv1})
    """)
    q_check()
    g("s_cbranch_vccz L_qk_inter")
    for n in range(nv1, NU): kv_load(n, vVV, vVO, sV, TMP)
    g.stamp(2)
    g.label("L_qpoll")
    q_loads()
    g("s_waitcnt vmcnt(0)")
    q_check()
    pollcheck("L_qok", "L_qpoll")
    g.label("L_qok")
    g.stamp(3)
    def qk_mfma(n):
        d = vD + 4*(n % 4)
        g(f"v_mfma_f32_16x16x32_bf16 {r4(d)}, {r4(vKK+2+4*n)}, {r4(vQ)}, 0")
    def qk_red(n):
        d = vD + 4*(n % 4)
        g(f"v_mul_f32_dpp v{vS+n}, v{d}, v{vC} quad_perm:[0,0,0,0] {DPPF}")
        for b in range(1, 4):
            g(f"v_fmac_f32_dpp v{vS+n}, v{d+b}, v{vC} quad_perm:[{b},{b},{b},{b}] {DPPF}")
    def qk(inter):
        g("s_nop 1")
        qk_mfma(0); qk_mfma(1); qk_mfma(2)
        g("s_nop 5")
        nv = nv1
        for n in range(NU):
            if n + 3 < NU: qk_mfma(n+3)
            else: g("s_nop 0")
            qk_red(n)
            if inter and nv < NU and (n % 2 == 0 or NU - nv >= NU - n):
                kv_load(nv, vVV, vVO, sV, TMP); nv += 1
        while inter and nv < NU:
            kv_load(nv, vVV, vVO, sV, TMP); nv += 1
    qk(False)
    g("s_branch L_soft")
    g.label("L_qk_inter")
    g.stamp(3)
    qk(True)
    g.stamp(2)
    g.label("L_soft")
    g(f"v_add_f32 v{vS}, s3, v{vS}")
    g(f"v_max3_f32 v{vM}, v{vS+1}, v{vS+2}, v{vS+3}")
    for n in range(4, NU, 2):
        g(f"v_max3_f32 v{vM}, v{vM}, v{vS+n}, v{vS+n+1}")
    g(f"v_max_f32 v{vM}, v{vM}, v{vS}")
    def allred_rows(v, op, tmp):
        g(f"""
        v_mov_b32 v{tmp}, v{v}
        s_nop 1
        v_permlane16_swap_b32 v{v}, v{tmp}
        s_nop 1
        {op} v{v}, v{v}, v{tmp}
        v_mov_b32 v{tmp}, v{v}
        s_nop 1
        v_permlane32_swap_b32 v{v}, v{tmp}
        s_nop 1
        {op} v{v}, v{v}, v{tmp}
        """)
    allred_rows(vM, "v_max_f32", vD)
    for n in range(NU):
        g(f"v_sub_f32 v{vS+n}, v{vS+n}, v{vM}")
    for n in range(NU):
        g(f"v_exp_f32 v{vS+n}, v{vS+n}")
        g(f"v_mov_b64 {r2(vKK+4*n)}, 0")
    g(f"v_mov_b64 {r2(vKK+4*NU)}, 0")
    g(f"v_pk_add_f32 {r2(vD+12)}, {r2(vS)}, {r2(vS+2)}")
    for n in range(4, NU, 2):
        g(f"v_pk_add_f32 {r2(vD+12)}, {r2(vD+12)}, {r2(vS+n)}")
    g(f"v_add_f32 v{vLS}, v{vD+12}, v{vD+13}")
    allred_rows(vLS, "v_add_f32", vD+12)
    g(f"""
    s_lshl_b32 {TMP}, {W}, 2
    s_add_u32 {TMP}, {TMP}, {L_ST}
    v_lshl_add_u32 v{vD+12}, v{vT1}, 5, {TMP}
    s_mov_b64 exec, 0x1111
    ds_write_b32 v{vD+12}, v{vM}
    ds_write_b32 v{vD+12}, v{vLS} offset:128
    s_mov_b64 exec, -1
    """)
    for n in range(0, NU, 2):
        g(f"v_cvt_pk_bf16_f32 v{vD+n//2}, v{vS+n}, v{vS+n+1}")
    g(f"""
    s_waitcnt lgkmcnt(0)
    s_cmp_lt_u32 {W}, 4
    s_cbranch_scc1 L_nob2
    s_barrier
    """)
    g.label("L_nob2")
    for n in range(NU):
        w = vD + n//2
        g(f"v_perm_b32 v{vKK+4*n+2}, v{w}, v{w}, v{vSEL + (n&1)}")
        g(f"v_perm_b32 v{vKK+4*n+3}, v{w}, v{w}, v{vSEL + 2 + (n&1)}")
    for i in range(0, 8, 2):
        g(f"v_mov_b64 {r2(vO+i)}, 0")
    g.stamp(4)
    def fcalc():
        g(f"""
        v_lshlrev_b32 v{vD+12}, 5, v{vT0}
        v_add_u32 v{vD+13}, {TMP}, v{vD+12}
        ds_read_b128 {r4(vD)}, v{vD+12} offset:{L_ST}
        ds_read_b128 {r4(vD+4)}, v{vD+12} offset:{L_ST+16}
        ds_read_b32 v{vF}, v{vD+13}
        s_waitcnt lgkmcnt(0)
        v_max3_f32 v{vM}, v{vD}, v{vD+1}, v{vD+2}
        v_max3_f32 v{vM}, v{vM}, v{vD+3}, v{vD+4}
        v_max3_f32 v{vM}, v{vM}, v{vD+5}, v{vD+6}
        v_max_f32 v{vM}, v{vM}, v{vD+7}
        v_sub_f32 v{vF}, v{vF}, v{vM}
        v_exp_f32 v{vF}, v{vF}
        """)
    g(f"""
    s_mul_i32 {TMP2}, {W}, 2304
    s_add_u32 {TMP2}, {TMP2}, {L_OB}
    v_add_u32 v{vQO}, {TMP2}, v{vVO}
    s_cmp_lt_u32 {W}, 4
    s_cbranch_scc1 L_pv
    """)
    fcalc()
    g.label("L_pv")
    for n in range(NU):
        g(f"s_waitcnt vmcnt({NU-1-n})")
        g(f"v_mfma_f32_16x16x32_bf16 {r4(vO)}, {r4(vKK+4*n+2)}, {r4(vVV+4*n)}, {r4(vO)}")
        g(f"v_mfma_f32_16x16x32_bf16 {r4(vO+4)}, {r4(vKK+4*n)}, {r4(vVV+4*n)}, {r4(vO+4)}")
    g.stamp(5)
    g(f"""
    s_cmp_ge_u32 {W}, 4
    s_cbranch_scc1 L_owrite
    """)
    g(f"""
    v_lshrrev_b32 v{vKO}, 2, v0
    v_lshlrev_b32 v{vKO}, 4, v{vKO}
    v_and_b32 v{vD+2}, 1, v0
    v_lshl_add_u32 v{vKO}, v{vD+2}, 3, v{vKO}
    v_bfe_u32 v{vD+2}, v0, 1, 1
    v_mul_u32_u24 v{vD+2}, 1152, v{vD+2}
    v_add_u32 v{vKO}, v{vKO}, v{vD+2}
    v_lshlrev_b32 v{vC}, 2, v0
    s_lshl_b32 {TMP3}, {SLOT}, 10
    s_add_u32 {TMP3}, {TMP3}, {WS_OP}
    s_barrier
    """)
    fcalc()
    g(f"""
    s_cmp_lg_u32 {W}, 0
    s_cbranch_scc1 L_owrite
    ds_read_b128 {r4(vS)}, v{vD+12} offset:{L_ST+128}
    ds_read_b128 {r4(vS+4)}, v{vD+12} offset:{L_ST+144}
    """)
    for i in range(8): g(f"v_sub_f32 v{vD+i}, v{vD+i}, v{vM}")
    for i in range(8): g(f"v_exp_f32 v{vD+i}, v{vD+i}")
    g(f"s_waitcnt lgkmcnt(0)")
    g(f"v_mul_f32 v{vLS}, v{vD}, v{vS}")
    for i in range(1, 8): g(f"v_fmac_f32 v{vLS}, v{vD+i}, v{vS+i}")
    g(f"""
    v_lshlrev_b32 v{vD+8}, 3, v{vT0}
    s_lshl_b32 {TMP2}, {SLOT}, 7
    s_add_u32 {TMP2}, {TMP2}, {WS_ST}
    s_mov_b32 exec_lo, 0x00010001
    s_mov_b32 exec_hi, 0x00010001
    buffer_store_dwordx2 {r2(vM)}, v{vD+8}, {sWS}, {TMP2} offen sc1
    s_mov_b64 exec, -1
    """)
    g.stamp(8)
    g.label("L_owrite")
    g("s_nop 4")
    for i in range(8): g(f"v_mul_f32 v{vO+i}, v{vO+i}, v{vF}")
    g(f"""
    ds_write_b128 v{vQO}, {r4(vO)}
    ds_write_b128 v{vQO}, {r4(vO+4)} offset:1152
    s_waitcnt lgkmcnt(0)
    s_barrier
    """)
    g.stamp(6)
    g(f"""
    s_cmp_ge_u32 {W}, 4
    s_cbranch_scc1 L_fin
    """)
    for w in range(8):
        g(f"ds_read_b64 {r2(vS+2*w)}, v{vKO} offset:{L_OB+2304*w}")
    g(f"""
    s_waitcnt lgkmcnt(6)
    v_pk_add_f32 {r2(vS)}, {r2(vS)}, {r2(vS+2)}
    s_waitcnt lgkmcnt(4)
    v_pk_add_f32 {r2(vS+4)}, {r2(vS+4)}, {r2(vS+6)}
    s_waitcnt lgkmcnt(2)
    v_pk_add_f32 {r2(vS+8)}, {r2(vS+8)}, {r2(vS+10)}
    v_pk_add_f32 {r2(vS)}, {r2(vS)}, {r2(vS+4)}
    s_waitcnt lgkmcnt(0)
    v_pk_add_f32 {r2(vS+12)}, {r2(vS+12)}, {r2(vS+14)}
    v_pk_add_f32 {r2(vS)}, {r2(vS)}, {r2(vS+8)}
    v_pk_add_f32 {r2(vS)}, {r2(vS)}, {r2(vS+12)}
    v_cvt_pk_bf16_f32 v{vS}, v{vS}, v{vS+1}
    buffer_store_dword v{vS}, v{vC}, {sWS}, {TMP3} offen sc1
    """ if not stamps else f"""
    s_waitcnt lgkmcnt(0)
    v_pk_add_f32 {r2(vS)}, {r2(vS)}, {r2(vS+2)}
    v_pk_add_f32 {r2(vS+4)}, {r2(vS+4)}, {r2(vS+6)}
    v_pk_add_f32 {r2(vS+8)}, {r2(vS+8)}, {r2(vS+10)}
    v_pk_add_f32 {r2(vS)}, {r2(vS)}, {r2(vS+4)}
    v_pk_add_f32 {r2(vS+12)}, {r2(vS+12)}, {r2(vS+14)}
    v_pk_add_f32 {r2(vS)}, {r2(vS)}, {r2(vS+8)}
    v_pk_add_f32 {r2(vS)}, {r2(vS)}, {r2(vS+12)}
    v_cvt_pk_bf16_f32 v{vS}, v{vS}, v{vS+1}
    buffer_store_dword v{vS}, v{vC}, {sWS}, {TMP3} offen sc1
    """)
    g.stamp(7)
    g.label("L_fin")
    if stamps:
        g.stamp(13)
        g(f"""
        s_waitcnt lgkmcnt(0)
        s_lshl_b32 {TMP2}, s2, 3
        s_add_u32 {TMP2}, {TMP2}, {W}
        s_lshl_b32 {TMP2}, {TMP2}, 7
        s_add_u32 {TMP2}, {TMP2}, {WS_STAMP}
        s_mov_b64 exec, -1
        """)
        for i in range(28): g(f"v_mov_b32 v{100+i}, s{72+i}")
        g(f"v_mov_b32 v99, 0\ns_mov_b64 exec, 1")
        for i in range(7): g(f"buffer_store_dwordx4 {r4(100+4*i)}, v99, {sWS}, {TMP2} offen offset:{16*i}")
    g.label("L_end")
    g("s_endpgm")

    vA128=6
    vTR=7
    vTR64=11
    vU=12
    vWT=28
    vA=36
    vD2=52
    vWO=88
    vGU=120
    vWD=152
    vP=168
    vXF=216
    vCS=224
    g.label("L_service")
    g(f"""
    v_lshrrev_b32 v{vU}, 3, v{vL}
    v_and_b32 v{vU+1}, 7, v{vL}
    v_and_b32 v{vU+2}, 2, v{vU}
    v_xor_b32 v{vU+1}, v{vU+1}, v{vU+2}
    v_xor_b32 v{vU+2}, 4, v{vU+1}
    v_lshlrev_b32 v{vU+1}, 4, v{vU+1}
    v_lshlrev_b32 v{vU+2}, 4, v{vU+2}
    v_lshl_add_u32 v{vU+3}, v{vU}, 13, v{vU+1}
    v_lshl_add_u32 v{vU+4}, v{vU}, 13, v{vU+2}
    v_lshl_add_u32 v{vU+5}, v{vU}, 10, v{vU+1}
    v_lshl_add_u32 v{vU+6}, v{vU}, 10, v{vU+2}
    s_lshl_b32 {LW}, {W}, 14
    s_add_u32 {LW}, {LW}, {L_W}
    s_lshl_b32 {TMP2}, {X}, 10
    s_lshl_b32 {TMP3}, {NS}, 7
    s_add_u32 {TMP2}, {TMP2}, {TMP3}
    s_lshl_b32 {TMP3}, {W}, 19
    s_add_u32 {TMP2}, {TMP2}, {TMP3}
    s_mov_b32 {TMP3}, {LW}
    s_waitcnt lgkmcnt(0)
    s_mov_b32 s16, s70
    s_mov_b32 s17, s71
    s_load_dword {T}, s[70:71], {WS_EPOCH}
    """)
    srd(20, 54, 0x400000)
    srd(28, 48, 4096)
    vOFFQ = (vU+3, vU+4); vOFF1K = (vU+5, vU+6)
    for i in range(8): g(f"v_mov_b32 v{vA+i}, 0x3f803f80")
    g(f"""
    v_lshlrev_b32 v{vU+7}, 10, v{vT2}
    v_lshl_add_u32 v{vU+7}, v{vT0}, 4, v{vU+7}
    s_lshl_b32 {TMP}, {W}, 7
    s_mov_b32 exec_lo, 0x000f000f
    s_mov_b32 exec_hi, 0x000f000f
    buffer_load_dwordx4 {r4(vA)}, v{vU+7}, {sXS}, {TMP} offen
    buffer_load_dwordx4 {r4(vA+4)}, v{vU+7}, {sXS}, {TMP} offen offset:64
    s_mov_b64 exec, -1
    """)
    for i in range(8):
        g(f"""
        s_mov_b32 m0, {TMP3}
        s_add_u32 {TMP3}, {TMP3}, 1024
        buffer_load_dwordx4 v{vOFFQ[i&1]}, {sWA}, {TMP2} offen {wpol} lds
        s_add_u32 {TMP2}, {TMP2}, {8*8192}
        """)
    g("s_barrier")
    g(f"""
    v_mov_b32 v{vP}, -1
    v_mov_b32 v{vP+1}, -1
    v_mov_b32 v{vP+2}, -1
    v_mov_b32 v{vP+3}, -1
    v_lshlrev_b32 v{vU+8}, 4, v{vL}
    s_mul_i32 {JF}, {X}, 7
    s_add_u32 {JF}, {JF}, {NS}
    s_lshl_b32 {TMP2}, {JF}, 13
    s_lshl_b32 {TMP}, {W}, 10
    s_add_u32 {TMP2}, {TMP2}, {TMP}
    s_add_u32 {TMP2}, {TMP2}, {WS_DP}
    s_cmp_eq_u32 {NS}, 7
    s_cselect_b32 {TMP2}, 0x40000000, {TMP2}
    buffer_store_dwordx4 {r4(vP)}, v{vU+8}, {sWS}, {TMP2} offen sc1
    s_lshl_b32 {TMP}, {X}, 3
    s_add_u32 {TMP}, {TMP}, {NS}
    s_mul_i32 {TMP}, {TMP}, 3
    s_add_u32 {TMP2}, {TMP}, {W}
    s_lshl_b32 {TMP2}, {TMP2}, 10
    s_add_u32 {TMP2}, {TMP2}, {WS_OP}
    s_cmp_lt_u32 {W}, 3
    s_cbranch_scc1 L_clr_go
    s_lshl_b32 {TMP2}, {TMP}, 7
    s_add_u32 {TMP2}, {TMP2}, {WS_ST}
    s_mov_b64 exec, 0xffffff
    s_cmp_eq_u32 {W}, 3
    s_cbranch_scc1 L_clr_go
    s_sub_u32 {TMP2}, {W}, 4
    s_lshl_b32 {TMP2}, {TMP2}, 11
    s_lshl_b32 {TMP}, {X}, 13
    s_add_u32 {TMP2}, {TMP2}, {TMP}
    s_lshl_b32 {TMP}, {NS}, 8
    s_add_u32 {TMP2}, {TMP2}, {TMP}
    s_add_u32 {TMP2}, {TMP2}, {WS_AP}
    s_mov_b64 exec, 0xffff
    """)
    g.label("L_clr_go")
    g(f"""
    buffer_store_dwordx4 {r4(vP)}, v{vU+8}, {sWS}, {TMP2} offen sc1
    s_mov_b64 exec, -1
    """)
    srd(24, 56, 0x400000)
    g(f"""
    s_lshl_b32 {TMP2}, {X}, 19
    s_lshl_b32 {TMP}, {W}, 16
    s_add_u32 {TMP2}, {TMP2}, {TMP}
    s_lshl_b32 {TMP}, {NS}, 7
    s_add_u32 {TMP2}, {TMP2}, {TMP}
    """)
    def wo_dma(i):
        g(f"""
        s_mov_b32 m0, {TMP3}
        s_add_u32 {TMP3}, {TMP3}, 1024
        buffer_load_dwordx4 v{vOFF1K[i&1]}, {sWB}, {TMP2} offen {wpol} lds
        s_add_u32 {TMP2}, {TMP2}, {8*1024}
        """)
    for i in range(4): wo_dma(i)
    g(f"""
    v_lshrrev_b32 v{vU+9}, 1, v{vT1}
    v_and_b32 v{vU+10}, 1, v{vT0}
    v_lshl_or_b32 v{vU+9}, v{vU+10}, 1, v{vU+9}
    v_lshlrev_b32 v{vU+10}, 10, v{vT0}
    v_lshl_add_u32 v{vU+10}, v{vT1}, 7, v{vU+10}
    v_lshl_add_u32 v{vU+10}, v{vT2}, 3, v{vU+10}
    v_add_u32 v{vU+10}, {LW}, v{vU+10}
    """)
    for nt in range(4):
        g(f"v_xor_b32 v{vU+11}, {nt}, v{vU+9}")
        g(f"v_lshl_add_u32 v{vTR+nt}, v{vU+11}, 5, v{vU+10}")
    def tr128(dst, nt, off):
        g(f"ds_read_b64_tr_b16 {r2(dst)}, v{vTR+nt} offset:{off}")
        g(f"ds_read_b64_tr_b16 {r2(dst+2)}, v{vTR+nt} offset:{off+512}")
    g(f"""
    v_mul_u32_u24 v{vU+12}, 10240, v{vT0}
    v_lshl_add_u32 v{vU+12}, v{vT3}, 4, v{vU+12}
    s_lshl_b32 {TMP}, {W}, 8
    s_add_u32 {TMP}, {TMP}, {L_R}
    v_add_u32 v{vU+12}, {TMP}, v{vU+12}
    s_waitcnt vmcnt(6) lgkmcnt(0)
    s_add_u32 {T}, {T}, 1
    """)
    g.stamp(1)
    if stamps: g("s_waitcnt lgkmcnt(0)")
    vRW = vU+12
    for kt in range(2):
        for nt in range(4):
            tr128(vGU+16*kt+4*nt, nt, 4096*kt)
    g(f"v_mfma_f32_16x16x32_bf16 {r4(vD2+16)}, {r4(vA)}, {r4(vA)}, 0")
    g(f"v_mfma_f32_16x16x32_bf16 {r4(vD2+16)}, {r4(vA+4)}, {r4(vA+4)}, {r4(vD2+16)}")
    for kt in range(2):
        g(f"s_waitcnt lgkmcnt({8*(1-kt)})")
        for nt in range(4):
            g(f"v_mfma_f32_16x16x32_bf16 {r4(vD2+4*nt)}, {r4(vA+4*kt)}, {r4(vGU+16*kt+4*nt)}, {'0' if kt == 0 else r4(vD2+4*nt)}")
    for i in range(4, 8): wo_dma(i)
    g("s_mov_b32 exec_hi, 0")
    for t in (4, 0, 1, 2, 3):
        g(f"ds_write_b128 v{vRW}, {r4(vD2+4*t)} offset:{2048*t}")
    g(f"""
    s_mov_b32 exec_hi, -1
    s_waitcnt vmcnt(8) lgkmcnt(0)
    s_barrier
    s_cmp_ge_u32 {W}, 4
    s_cbranch_scc1 L_qdone
    """)
    def read8(dst, addr, unit0):
        for i in range(4):
            g(f"ds_read2st64_b32 {r2(dst+2*i)}, v{addr} offset0:{unit0+2*i} offset1:{unit0+2*i+1}")
    def sum8(bases):
        for b in bases:
            g(f"v_pk_add_f32 {r2(b)}, {r2(b)}, {r2(b+2)}")
            g(f"v_pk_add_f32 {r2(b+4)}, {r2(b+4)}, {r2(b+6)}")
        for b in bases: g(f"v_pk_add_f32 {r2(b)}, {r2(b)}, {r2(b+4)}")
        for b in bases: g(f"v_add_f32 v{b}, v{b}, v{b+1}")
    def ln_stats(S1, S2):
        g(f"""
        v_mul_f32 v{S1}, {f2u(1/512):#x}, v{S1}
        v_mul_f32 v{S2}, {f2u(1/512):#x}, v{S2}
        v_fma_f32 v{S2}, -v{S1}, v{S1}, v{S2}
        v_max_f32 v{S2}, 0, v{S2}
        v_add_f32 v{S2}, {f2u(1e-5):#x}, v{S2}
        v_rsq_f32 v{S2}, v{S2}
        """)
    g(f"""
    v_lshlrev_b32 v{vU}, 11, v{vT0}
    v_lshl_add_u32 v{vU}, v{vT3}, 4, v{vU}
    v_add_u32 v{vU}, {L_R}, v{vU}
    s_lshl_b32 {TMP}, {W}, 2
    v_add_u32 v{vU+1}, {TMP}, v{vU}
    s_mul_i32 {TMP2}, {W}, 20
    s_add_u32 {TMP2}, {TMP2}, {L_R+8192}
    v_mov_b32 v{vU+2}, {TMP2}
    s_add_u32 {TMP}, {TMP}, {L_R+8192+64}
    v_mov_b32 v{vU+7}, {TMP}
    """)
    read8(vP, vU+1, 0); read8(vP+8, vU, 40); read8(vP+16, vU+7, 0); read8(vP+24, vU+2, 0)
    g("s_waitcnt lgkmcnt(0)")
    sum8([vP, vP+8, vP+16, vP+24])
    ln_stats(vP+16, vP+24)
    g(f"""
    v_fma_f32 v{vP}, -v{vP+16}, v{vP+8}, v{vP}
    v_mul_f32 v{vP}, v{vP}, v{vP+24}
    s_lshl_b32 {TMP2}, {W}, 14
    s_lshl_b32 {TMP}, {X}, 11
    v_mov_b32_dpp v{vP+1}, v{vP} quad_perm:[1,1,3,3] {DPPF}
    s_add_u32 {TMP2}, {TMP2}, {TMP}
    s_lshl_b32 {TMP}, {NS}, 8
    s_add_u32 {TMP2}, {TMP2}, {TMP}
    s_add_u32 {TMP2}, {TMP2}, {WS_QG}
    v_cvt_pk_bf16_f32 v{vP}, v{vP}, v{vP+1}
    v_mov_b32 v{vP+1}, {T}
    v_lshlrev_b32 v{vU}, 2, v{vL}
    s_mov_b32 exec_lo, 0x55555555
    s_mov_b32 exec_hi, 0x55555555
    buffer_store_dwordx2 {r2(vP)}, v{vU}, {sWS}, {TMP2} offen sc1
    s_mov_b64 exec, 1
    s_lshl_b32 {TMP2}, {X}, 3
    s_add_u32 {TMP2}, {TMP2}, {NS}
    s_lshl_b32 {TMP2}, {TMP2}, 2
    s_add_u32 {TMP2}, {TMP2}, {WS_READY}
    s_cmp_lg_u32 {W}, 0
    s_cselect_b32 {TMP2}, 0x40000000, {TMP2}
    buffer_store_dword v{vP+1}, v{vU}, {sWS}, {TMP2} offen sc1
    s_mov_b64 exec, -1
    """)
    g.label("L_qdone")
    g.stamp(2)
    g(f"""
    s_cmp_eq_u32 {NS}, 7
    s_cbranch_scc1 L_nogu
    """)
    srd(20, 60, 512*3584)
    srd(24, 62, 512*3584)
    g(f"""
    v_lshrrev_b32 v{vU}, 2, v{vL}
    v_mul_u32_u24 v{vU}, 3584, v{vU}
    v_lshl_add_u32 v{vU}, v{vT2}, 4, v{vU}
    s_lshl_b32 {TMP2}, {JF}, 6
    s_mul_i32 {TMP}, {W}, {64*3584}
    s_add_u32 {TMP2}, {TMP2}, {TMP}
    s_mov_b32 {TMP3}, {LW}
    """)
    for i in range(4):
        g(f"""
        s_mov_b32 m0, {TMP3}
        s_add_u32 {TMP3}, {TMP3}, 4096
        buffer_load_dwordx4 v{vU}, {sWA}, {TMP2} offen {wpol} lds
        s_mov_b32 m0, {TMP3}
        s_sub_u32 {TMP3}, {TMP3}, {4096-1024}
        buffer_load_dwordx4 v{vU}, {sWB}, {TMP2} offen {wpol} lds
        s_add_u32 {TMP2}, {TMP2}, {16*3584}
        """)
    g("s_waitcnt vmcnt(8)")
    g("s_branch L_wo_rd")
    g.label("L_nogu")
    g("s_waitcnt vmcnt(0)")
    g.label("L_wo_rd")
    for kt in range(2):
        for nt in range(4):
            tr128(vWO+16*kt+4*nt, nt, 8192+4096*kt)
    g(f"""
    s_waitcnt lgkmcnt(0)
    s_cmp_eq_u32 {NS}, 7
    s_cbranch_scc1 L_wdone
    """)
    srd(20, 64, 1792*1024)
    g(f"""
    s_lshl_b32 {TMP2}, {JF}, 15
    s_lshl_b32 {TMP}, {W}, 7
    s_add_u32 {TMP2}, {TMP2}, {TMP}
    s_add_u32 {TMP3}, {LW}, 8192
    """)
    for i in range(4):
        g(f"""
        s_mov_b32 m0, {TMP3}
        s_add_u32 {TMP3}, {TMP3}, 1024
        buffer_load_dwordx4 v{vOFF1K[i&1]}, {sWA}, {TMP2} offen {wpol} lds
        s_add_u32 {TMP2}, {TMP2}, {8*1024}
        """)
    g(f"""
    v_lshlrev_b32 v{vU}, 10, v{vT0}
    v_lshl_add_u32 v{vU}, v{vT3}, 3, v{vU}
    s_lshl_b32 {TMP2}, {W}, 7
    buffer_load_dwordx2 {r2(vXF)}, v{vU}, {sXS}, {TMP2} offen
    v_lshlrev_b32 v{vTR64}, 9, v{vT0}
    v_lshl_add_u32 v{vTR64}, v{vT1}, 6, v{vTR64}
    v_lshl_add_u32 v{vTR64}, v{vT2}, 3, v{vTR64}
    v_add_u32 v{vTR64}, {LW}, v{vTR64}
    s_waitcnt vmcnt(5)
    """)
    for kt in range(2):
        for nt in range(4):
            off = 4096*(nt >> 1) + 2048*kt + 32*(nt & 1)
            g(f"ds_read_b64_tr_b16 {r2(vGU+16*kt+4*nt)}, v{vTR64} offset:{off}")
            g(f"ds_read_b64_tr_b16 {r2(vGU+16*kt+4*nt+2)}, v{vTR64} offset:{off+256}")
    g("s_waitcnt vmcnt(0) lgkmcnt(0)")
    for nt in range(4): tr128(vWD+4*nt, nt, 8192)
    g(f"""
    v_lshlrev_b32 v{vXF+4}, 16, v{vXF}
    v_and_b32 v{vXF+5}, 0xffff0000, v{vXF}
    v_lshlrev_b32 v{vXF+6}, 16, v{vXF+1}
    v_and_b32 v{vXF+7}, 0xffff0000, v{vXF+1}
    """)
    g(f"""
    s_mul_i32 {TMP}, {W}, 768
    s_add_u32 {TMP}, {TMP}, {L_HT}
    v_mov_b32 v{vU}, 0x3f803f80
    v_mov_b32 v{vU+1}, 0x3f803f80
    v_lshl_add_u32 v{vU+2}, v{vT3}, 3, {TMP}
    ds_write_b64 v{vU+2}, {r2(vU)} offset:576
    v_mov_b32 v{vU}, 0
    v_lshlrev_b32 v{vU+2}, 2, v{vT3}
    ds_write_b32 v{vU+2}, v{vU} offset:{L_ACT+320}
    s_waitcnt lgkmcnt(0)
    """)
    g.label("L_wdone")
    g.stamp(3)
    g(f"""
    v_lshlrev_b32 v{vU}, 2, v{vL}
    s_mov_b32 {CNT}, 0
    s_mov_b32 {TMP2}, {WS_READY}
    """)
    g.label("L_rpoll")
    g(f"""
    buffer_load_dword v{vU+1}, v{vU}, {sWS}, {TMP2} offen sc1
    s_waitcnt vmcnt(0)
    v_cmp_ne_u32 vcc, {T}, v{vU+1}
    """)
    pollcheck("L_rdone", "L_rpoll")
    g.label("L_rdone")
    g(f"""
    v_and_b32 v{vU}, 7, v{vL}
    v_cmp_gt_u32 s[4:5], 6, v{vU}
    v_min_u32 v{vU}, 5, v{vU}
    v_bfe_u32 v{vU+1}, v{vL}, 3, 2
    v_mad_u32_u24 v{vU+2}, v{vU+1}, 6, v{vU}
    v_lshlrev_b32 v{vU+2}, 7, v{vU+2}
    v_bfe_u32 v{vU+1}, v{vL}, 3, 1
    v_mad_u32_u24 v{vU+3}, v{vU+1}, 6, v{vU}
    v_lshlrev_b32 v{vU+3}, 10, v{vU+3}
    v_lshl_add_u32 v{vU+3}, v{vT0}, 4, v{vU+3}
    s_mul_i32 {TMP2}, {X}, {24*128}
    s_lshr_b32 {TMP3}, {W}, 1
    s_lshl_b32 {TMP3}, {TMP3}, 3
    s_add_u32 {TMP2}, {TMP2}, {TMP3}
    s_add_u32 {TMP2}, {TMP2}, {WS_ST}
    s_mov_b32 {CNT}, 0
    """)
    g.label("L_spoll")
    g(f"""
    buffer_load_dwordx2 {r2(vU+4)}, v{vU+2}, {sWS}, {TMP2} offen sc1
    s_waitcnt vmcnt(0)
    v_max_u32 v{vU+6}, v{vU+4}, v{vU+5}
    v_cmp_eq_u32 vcc, -1, v{vU+6}
    """)
    pollcheck("L_sok", "L_spoll")
    g.label("L_sok")
    g.stamp(4)
    g(f"""
    s_mul_i32 {TMP2}, {X}, {24*1024}
    s_lshl_b32 {TMP3}, {W}, 7
    s_add_u32 {TMP2}, {TMP2}, {TMP3}
    s_add_u32 {TMP2}, {TMP2}, {WS_OP}
    s_add_u32 {TMP3}, {TMP2}, {12*1024}
    """)
    def op_loads():
        g(f"""
        buffer_load_dwordx4 {r4(vA)}, v{vU+3}, {sWS}, {TMP2} offen sc1
        buffer_load_dwordx4 {r4(vA+4)}, v{vU+3}, {sWS}, {TMP2} offen offset:64 sc1
        buffer_load_dwordx4 {r4(vA+8)}, v{vU+3}, {sWS}, {TMP3} offen sc1
        buffer_load_dwordx4 {r4(vA+12)}, v{vU+3}, {sWS}, {TMP3} offen offset:64 sc1
        """)
    op_loads()
    def red8(dst, op):
        for ctl in ("quad_perm:[1,0,3,2]", "quad_perm:[2,3,0,1]", "row_half_mirror"):
            g(f"s_nop 1\n{op}_dpp v{dst}, v{dst}, v{dst} {ctl} {DPPF}")
    g(f"v_mov_b32 v{vU+6}, v{vU+4}")
    red8(vU+6, "v_max_f32")
    g(f"""
    v_sub_f32 v{vU+6}, v{vU+4}, v{vU+6}
    v_exp_f32 v{vU+6}, v{vU+6}
    s_nop 0
    v_cndmask_b32 v{vU+6}, 0, v{vU+6}, s[4:5]
    v_mul_f32 v{vU+7}, v{vU+6}, v{vU+5}
    """)
    red8(vU+7, "v_add_f32")
    g(f"""
    v_rcp_f32 v{vU+7}, v{vU+7}
    s_lshl_b32 {TMP}, {W}, 7
    s_add_u32 {TMP}, {TMP}, {L_WT}
    v_mul_f32 v{vU+6}, v{vU+6}, v{vU+7}
    v_and_b32 v{vU+8}, 31, v{vL}
    v_lshl_add_u32 v{vU+8}, v{vU+8}, 2, {TMP}
    v_lshl_add_u32 v{vU+9}, v{vT0}, 4, {TMP}
    ds_write_b32 v{vU+8}, v{vU+6}
    s_waitcnt lgkmcnt(0)
    ds_read_b128 {r4(vWT)}, v{vU+9}
    ds_read_b128 {r4(vWT+4)}, v{vU+9} offset:64
    """)
    g(f"""
    v_lshrrev_b32 v{vU+8}, 1, v{vT0}
    v_lshl_add_u32 v{vU+8}, v{vU+8}, 6, v{vT3}
    v_mul_u32_u24 v{vU+8}, 80, v{vU+8}
    v_and_b32 v{vU+9}, 1, v{vT0}
    v_lshl_add_u32 v{vU+8}, v{vU+9}, 2, v{vU+8}
    s_lshl_b32 {TMP}, {W}, 3
    s_add_u32 {TMP}, {TMP}, {L_R}
    v_add_u32 v{vU+8}, {TMP}, v{vU+8}
    v_mul_u32_u24 v{vU+9}, 80, v0
    v_lshlrev_b32 v{vU+10}, 2, v{vL}
    s_mov_b32 {CNT}, 0
    s_branch L_ochk
    """)
    g.label("L_opoll")
    op_loads()
    g.label("L_ochk")
    g("s_waitcnt vmcnt(0)")
    sentinel_check(vA, 16, vU+11)
    pollcheck("L_ook", "L_opoll")
    g.label("L_ook")
    g.stamp(5)
    g("s_waitcnt lgkmcnt(0)")
    seq = [(t, nt) for t in range(2) for nt in range(4)]
    def o_mfma(i):
        t, nt = seq[i]; d = vD2 + 4*i
        g(f"v_mfma_f32_16x16x32_bf16 {r4(d)}, {r4(vA+8*t)}, {r4(vWO+4*nt)}, 0")
        g(f"v_mfma_f32_16x16x32_bf16 {r4(d)}, {r4(vA+8*t+4)}, {r4(vWO+16+4*nt)}, {r4(d)}")
    def o_post(i):
        t, nt = seq[i]; d = vD2 + 4*i
        g(f"v_pk_mul_f32 {r2(d)}, {r2(d)}, {r2(vWT+4*t)}")
        g(f"v_pk_fma_f32 {r2(d)}, {r2(d+2)}, {r2(vWT+4*t+2)}, {r2(d)}")
        g(f"v_add_f32 v{d}, v{d}, v{d+1}")
        g(f"ds_write_b32 v{vU+8}, v{d} offset:{(t*128+nt*16)*80}")
    o_mfma(0); o_mfma(1); o_mfma(2)
    g("s_nop 1")
    for i in range(8):
        if i + 3 < 8: o_mfma(i+3)
        else: g("s_nop 1")
        o_post(i)
    g(f"""
    s_lshl_b32 {TMP2}, {X}, 13
    s_lshl_b32 {TMP}, {W}, 11
    s_add_u32 {TMP2}, {TMP2}, {TMP}
    s_lshl_b32 {TMP}, {NS}, 8
    s_add_u32 {TMP2}, {TMP2}, {TMP}
    s_add_u32 {TMP2}, {TMP2}, {WS_AP}
    s_waitcnt lgkmcnt(0)
    s_barrier
    s_cmp_ge_u32 {W}, 4
    s_cbranch_scc1 L_h2
    """)
    for i in range(4): g(f"ds_read_b128 {r4(vP+4*i)}, v{vU+9} offset:{L_R+16*i}")
    g("s_waitcnt lgkmcnt(0)")
    g(f"""
    v_pk_add_f32 {r2(vP)}, {r2(vP)}, {r2(vP+2)}
    v_pk_add_f32 {r2(vP+4)}, {r2(vP+4)}, {r2(vP+6)}
    v_pk_add_f32 {r2(vP+8)}, {r2(vP+8)}, {r2(vP+10)}
    v_pk_add_f32 {r2(vP+12)}, {r2(vP+12)}, {r2(vP+14)}
    v_pk_add_f32 {r2(vP)}, {r2(vP)}, {r2(vP+4)}
    v_pk_add_f32 {r2(vP+8)}, {r2(vP+8)}, {r2(vP+12)}
    v_pk_add_f32 {r2(vP)}, {r2(vP)}, {r2(vP+8)}
    v_add_f32 v{vP}, v{vP}, v{vP+1}
    buffer_store_dword v{vP}, v{vU+10}, {sWS}, {TMP2} offen sc1
    """)
    g.label("L_h2")
    g.stamp(6)
    g(f"""
    s_cmp_eq_u32 {NS}, 7
    s_cbranch_scc1 L_final
    """)
    g(f"""
    v_lshlrev_b32 v{vU}, 11, v{vT0}
    v_lshl_add_u32 v{vU}, v{vT3}, 4, v{vU}
    s_lshl_b32 {TMP2}, {W}, 8
    s_add_u32 {TMP2}, {TMP2}, {WS_AP}
    s_mul_i32 {TMP}, {W}, 768
    s_add_u32 {TMP}, {TMP}, {L_HT}
    v_mul_u32_u24 v{vU+1}, 144, v{vT0}
    v_lshl_add_u32 v{vU+1}, v{vT3}, 3, v{vU+1}
    v_add_u32 v{vU+1}, {TMP}, v{vU+1}
    v_min_u32 v{vU+2}, 4, v{vT3}
    v_mul_u32_u24 v{vU+2}, 144, v{vU+2}
    v_lshl_add_u32 v{vU+2}, v{vT0}, 4, v{vU+2}
    v_add_u32 v{vU+2}, {TMP}, v{vU+2}
    s_mov_b32 {CNT}, 0
    s_barrier
    """)
    g.label("L_apoll")
    for xx in range(8):
        if xx: g(f"s_add_u32 {TMP3}, {TMP2}, {8192*xx}")
        g(f"buffer_load_dwordx4 {r4(vP+4*xx)}, v{vU}, {sWS}, {TMP3 if xx else TMP2} offen sc1")
    g("s_waitcnt vmcnt(0)")
    sentinel_check(vP, 32, vU+11)
    pollcheck("L_aok", "L_apoll")
    g.label("L_aok")
    g.stamp(7)
    for st in (4, 8, 16):
        for i in range(0, 32, 2*st):
            g(f"v_pk_add_f32 {r2(vP+i)}, {r2(vP+i)}, {r2(vP+i+st)}")
            g(f"v_pk_add_f32 {r2(vP+i+2)}, {r2(vP+i+2)}, {r2(vP+i+st+2)}")
    g(f"""
    v_pk_add_f32 {r2(vP)}, {r2(vP)}, {r2(vXF+4)}
    v_pk_add_f32 {r2(vP+2)}, {r2(vP+2)}, {r2(vXF+6)}
    v_cvt_pk_bf16_f32 v{vP+4}, v{vP}, v{vP+1}
    v_cvt_pk_bf16_f32 v{vP+5}, v{vP+2}, v{vP+3}
    ds_write_b64 v{vU+1}, {r2(vP+4)}
    s_waitcnt lgkmcnt(0)
    ds_read_b128 {r4(vA)}, v{vU+2}
    ds_read_b128 {r4(vA+4)}, v{vU+2} offset:64
    """)
    g(f"""
    v_bfe_u32 v{vU+3}, v0, 4, 1
    v_lshlrev_b32 v{vU+3}, 11, v{vU+3}
    v_lshl_add_u32 v{vU+3}, v{vT3}, 4, v{vU+3}
    v_add_u32 v{vU+3}, {L_R}, v{vU+3}
    v_bfe_u32 v{vU+4}, v0, 5, 2
    v_lshl_add_u32 v{vU+5}, v{vU+4}, 2, v{vU+3}
    v_mul_u32_u24 v{vU+6}, 20, v{vU+4}
    v_add_u32 v{vU+6}, {L_R+8192}, v{vU+6}
    v_lshlrev_b32 v{vU+7}, 2, v{vU+4}
    v_add_u32 v{vU+7}, {L_R+8192+64}, v{vU+7}
    s_waitcnt lgkmcnt(0)
    """)
    for kt in range(2):
        for nt in range(4):
            g(f"v_mfma_f32_16x16x32_bf16 {r4(vD2+4*nt)}, {r4(vA+4*kt)}, {r4(vGU+16*kt+4*nt)}, {'0' if kt == 0 else r4(vD2+4*nt)}")
        g(f"v_mfma_f32_16x16x32_bf16 {r4(vD2+16)}, {r4(vA+4*kt)}, {r4(vA+4*kt)}, {'0' if kt == 0 else r4(vD2+16)}")
    g(f"""
    v_mul_u32_u24 v{vU+8}, 80, v{vU+4}
    v_and_b32 v{vU+9}, 31, v0
    v_lshl_add_u32 v{vU+8}, v{vU+9}, 1, v{vU+8}
    s_mov_b32 exec_hi, 0
    """)
    for t in range(5):
        g(f"ds_write_b128 v{vRW}, {r4(vD2+4*t)} offset:{2048*t}")
        if t == 3: g("s_nop 0")
    g(f"""
    s_mov_b32 exec_hi, -1
    v_mul_u32_u24 v{vU+9}, 80, v{vT2}
    v_lshl_add_u32 v{vU+9}, v{vT0}, 4, v{vU+9}
    v_mov_b32 v{vU+10}, 320
    """)
    for t in range(4):
        g(f"v_cmp_eq_u32 vcc, {t}, v{vT1}\ns_nop 1\nv_cndmask_b32 v{vCS+t}, v{vU+10}, v{vU+9}, vcc")
    g(f"""
    s_waitcnt lgkmcnt(0)
    s_barrier
    s_cmp_ge_u32 {W}, 2
    s_cbranch_scc1 L_act_done
    """)
    read8(vP+16, vU+7, 0); read8(vP+24, vU+6, 0)
    read8(vP, vU+5, 0); read8(vP+8, vU+5, 16); read8(vP+32, vU+3, 40); read8(vP+40, vU+3, 56)
    g("s_waitcnt lgkmcnt(0)")
    sum8([vP+16, vP+24, vP, vP+8, vP+32, vP+40])
    Gv, Uv, S1, S2, CG, CU = vP, vP+8, vP+16, vP+24, vP+32, vP+40
    ln_stats(S1, S2)
    g(f"""
    v_fma_f32 v{Gv}, -v{S1}, v{CG}, v{Gv}
    v_fma_f32 v{Uv}, -v{S1}, v{CU}, v{Uv}
    v_mul_f32 v{Gv}, v{Gv}, v{S2}
    v_mul_f32 v{Uv}, v{Uv}, v{S2}
    v_mul_f32 v{CG}, {f2u(-math.log2(math.e)):#x}, v{Gv}
    v_exp_f32 v{CG}, v{CG}
    v_mul_f32 v{Uv}, v{Uv}, v{Gv}
    v_add_f32 v{CG}, 1.0, v{CG}
    v_rcp_f32 v{CG}, v{CG}
    s_nop 0
    v_mul_f32 v{Uv}, v{Uv}, v{CG}
    v_cvt_pk_bf16_f32 v{Uv}, v{Uv}, v{Uv}
    ds_write_b16 v{vU+8}, v{Uv} offset:{L_ACT}
    s_waitcnt lgkmcnt(0)
    """)
    g.label("L_act_done")
    g("s_barrier")
    g.stamp(8)
    for t in range(4): g(f"ds_read_b128 {r4(vA+4*t)}, v{vCS+t} offset:{L_ACT}")
    g(f"""
    v_lshlrev_b32 v{vU}, 11, v{vT2}
    v_lshl_add_u32 v{vU}, v{vT1}, 6, v{vU}
    v_lshl_add_u32 v{vU}, v{vT0}, 4, v{vU}
    s_lshl_b32 {TMP2}, {JF}, 13
    s_lshl_b32 {TMP}, {W}, 8
    s_add_u32 {TMP2}, {TMP2}, {TMP}
    s_add_u32 {TMP2}, {TMP2}, {WS_DP}
    s_waitcnt lgkmcnt(0)
    """)
    for t in range(4):
        g(f"v_mfma_f32_16x16x32_bf16 {r4(vD2)}, {r4(vWD+4*t)}, {r4(vA+4*t)}, {'0' if t == 0 else r4(vD2)}")
    g(f"""
    s_nop 7
    buffer_store_dwordx4 {r4(vD2)}, v{vU}, {sWS}, {TMP2} offen sc1
    """)
    g.stamp(9)
    g("s_branch L_fin")
    g.label("L_final")
    srd(32, 66, 4096)
    g(f"""
    s_lshl_b32 {JF}, {X}, 3
    s_add_u32 {JF}, {JF}, {W}
    v_lshrrev_b32 v{vU}, 3, v{vL}
    v_lshlrev_b32 v{vU}, 13, v{vU}
    v_and_b32 v{vU+1}, 7, v{vL}
    v_lshl_add_u32 v{vU}, v{vU+1}, 4, v{vU}
    s_lshl_b32 {TMP}, {JF}, 7
    s_add_u32 {TMP2}, {TMP}, {WS_AP}
    """)
    g(f"""
    v_lshrrev_b32 v{vU+2}, 5, v{vL}
    v_bfe_u32 v{vU+3}, v{vL}, 4, 1
    v_lshl_add_u32 v{vU+2}, v{vU+3}, 1, v{vU+2}
    v_lshl_add_u32 v{vU+2}, v{vU+1}, 2, v{vU+2}
    v_lshlrev_b32 v{vU+2}, 1, v{vU+2}
    s_lshl_b32 {TMP3}, {JF}, 6
    buffer_load_ushort v{vU+4}, v{vU+2}, {sXS}, {TMP3} offen
    s_mov_b32 {CNT}, 0
    """)
    g.label("L_hpoll")
    g(f"buffer_load_dwordx4 {r4(vP+28)}, v{vU}, {sWS}, {TMP2} offen sc1")
    g("s_waitcnt vmcnt(0)")
    sentinel_check(vP+28, 4, vU+11)
    pollcheck("L_hok", "L_hpoll")
    g.label("L_hok")
    g.stamp(7)
    g(f"""
    v_lshlrev_b32 v{vU+4}, 16, v{vU+4}
    s_add_u32 {TMP2}, {TMP}, {WS_DP}
    s_mov_b32 {CNT}, 0
    """)
    g.label("L_dpoll")
    for i in range(7):
        if i: g(f"s_add_u32 {TMP}, {TMP2}, {65536*i}")
        g(f"buffer_load_dwordx4 {r4(vP+4*i)}, v{vU}, {sWS}, {TMP if i else TMP2} offen sc1")
    g("s_waitcnt vmcnt(0)")
    sentinel_check(vP, 28, vU+11)
    pollcheck("L_dok", "L_dpoll")
    g.label("L_dok")
    g.stamp(8)
    for st in (4, 8, 16):
        for i in range(0, 32, 2*st):
            g(f"v_pk_add_f32 {r2(vP+i)}, {r2(vP+i)}, {r2(vP+i+st)}")
            g(f"v_pk_add_f32 {r2(vP+i+2)}, {r2(vP+i+2)}, {r2(vP+i+st+2)}")
    g(f"""
    s_nop 1
    v_permlane32_swap_b32 v{vP}, v{vP+1}
    v_permlane32_swap_b32 v{vP+2}, v{vP+3}
    s_nop 1
    v_add_f32 v{vP}, v{vP}, v{vP+1}
    v_add_f32 v{vP+2}, v{vP+2}, v{vP+3}
    s_nop 1
    v_permlane16_swap_b32 v{vP}, v{vP+2}
    s_nop 1
    v_add_f32 v{vP}, v{vP}, v{vP+2}
    s_nop 1
    v_add_f32_dpp v{vP}, v{vP}, v{vP} row_ror:8 {DPPF}
    v_add_f32 v{vP}, v{vP}, v{vU+4}
    v_cvt_pk_bf16_f32 v{vP}, v{vP}, v{vP}
    s_mov_b32 exec_lo, 0x00ff00ff
    s_mov_b32 exec_hi, 0x00ff00ff
    buffer_store_short v{vP}, v{vU+2}, {sOUT}, {TMP3} offen
    s_mov_b64 exec, 1
    s_cmp_lg_u32 {JF}, 0
    s_cselect_b32 {TMP2}, 0x40000000, {WS_EPOCH}
    v_mov_b32 v{vP+1}, {T}
    v_mov_b32 v{vP+2}, 0
    buffer_store_dword v{vP+1}, v{vP+2}, {sWS}, {TMP2} offen
    s_mov_b64 exec, -1
    """)
    g.stamp(9)
    g("s_branch L_fin")

    NVGPR = 248
    hdr = open("sequential_preLN__gqa_block_cached__swiglu_ffn__decode.s.ref").read().split("; Override launch")[0]
    return hdr + f"""; @launch grid=(256,1,1) block=(512,1,1) lds={LDS_BYTES}
.amdgcn_target "amdgcn-amd-amdhsa--gfx950"
.text
.globl {KN}
.p2align 8
.type {KN},@function
{KN}:
""" + g.text() + f"""
.section .rodata,"a"
.p2align 6
.amdhsa_kernel {KN}
  .amdhsa_next_free_vgpr {NVGPR}
  .amdhsa_next_free_sgpr 102
  .amdhsa_accum_offset {NVGPR}
  .amdhsa_group_segment_fixed_size 0
  .amdhsa_kernarg_size 96
  .amdhsa_user_sgpr_count 2
  .amdhsa_user_sgpr_kernarg_segment_ptr 1
  .amdhsa_system_sgpr_workgroup_id_x 1
.end_amdhsa_kernel
"""

if __name__ == "__main__":
    open("v2.s", "w").write(build(False))
    open("v2s.s", "w").write(build(True))
    print("LDS", LDS_BYTES)
```

```python
import sys, math, struct
KN = "sequential_preLN__gqa_block_cached__swiglu_ffn__decode_kernel"
def f2u(x): return struct.unpack("<I", struct.pack("<f", x))[0]

class G:
    def __init__(self, stamps=False):
        self.L = []; self.stamps = stamps
    def __call__(self, s):
        for ln in s.strip("\n").split("\n"):
            if ln.strip(): self.L.append("    " + ln.strip())
    def label(self, n): self.L.append(n + ":")
    def stamp(self, i):
        if self.stamps: self(f"s_memrealtime s[{72+2*i}:{73+2*i}]")
    def text(self): return "\n".join(self.L) + "\n"

WS_EPOCH = 0x0
WS_READY = 0x1000
WS_QG    = 0x10000
WS_ST    = 0x20000
WS_OP    = 0x40000
WS_AP    = 0x80000
WS_DP    = 0x100000
WS_STAMP = 0xF000000
L_ST  = 0
L_OB  = 256
L_WT  = 0
L_HT  = 1024
L_ACT = L_HT + 8*768
L_R   = L_ACT + 512
L_W   = L_R + 20480
L_END = L_W + 8*16384
LDS_BYTES = (L_END + 255)//256*256
assert LDS_BYTES <= 160*1024

sK="s[8:11]"; sV="s[12:15]"; sWS="s[16:19]"; sWA="s[20:23]"; sWB="s[24:27]"; sXS="s[28:31]"; sOUT="s[32:35]"
W="s36"; X="s37"; R="s38"; T="s39"; KVOFF="s40"; TMP="s41"; TMP2="s42"; CNT="s43"; SLOT="s44"; B_="s45"; TMP3="s46"; OPT="s47"
NS=R; LW="s40"; JF="s44"; DONE="s45"
POLLMAX = 200000
NU = 22
def r4(b): return f"v[{b}:{b+3}]"
def r2(b): return f"v[{b}:{b+1}]"
DPPF = "row_mask:0xf bank_mask:0xf"

def build(stamps=False, pol="nt", wpol="nt", nv1=10, dbg=False):
    g = G(stamps)
    vL=1; vT0=2; vT1=3; vT2=4; vT3=5
    def pollcheck(lab_ok, lab_again):
        g(f"""
        s_add_u32 {CNT}, {CNT}, 1
        s_cmp_gt_u32 {CNT}, {POLLMAX}
        s_cbranch_scc1 {lab_ok}
        s_cbranch_vccnz {lab_again}
        """)
    def sentinel_check(base, n, tmp, dst="vcc"):
        g(f"v_max3_u32 v{tmp}, v{base}, v{base+1}, v{base+2}")
        i = 3
        while i + 1 < n:
            g(f"v_max3_u32 v{tmp}, v{tmp}, v{base+i}, v{base+i+1}"); i += 2
        if i < n: g(f"v_max_u32 v{tmp}, v{tmp}, v{base+i}")
        g(f"v_cmp_eq_u32 {dst}, -1, v{tmp}")
    def srd(d, lo, size):
        g(f"s_mov_b32 s{d}, s{lo}\ns_mov_b32 s{d+1}, s{lo+1}\ns_mov_b32 s{d+2}, {size:#x}\ns_mov_b32 s{d+3}, 0x20000")

    if stamps:
        for i in range(1, 14): g(f"s_mov_b64 s[{72+2*i}:{73+2*i}], 0")
    g.stamp(0)
    g(f"""
    s_cmp_ge_u32 s2, 256
    s_cbranch_scc1 L_end
    s_load_dwordx16 s[48:63], s[0:1], 0
    s_load_dwordx8 s[64:71], s[0:1], 64
    v_lshrrev_b32 v{vT0}, 6, v0
    v_and_b32 v{vL}, 63, v0
    s_and_b32 {X}, s2, 7
    v_readfirstlane_b32 {W}, v{vT0}
    s_lshr_b32 {R}, s2, 3
    v_lshrrev_b32 v{vT0}, 4, v{vL}
    v_bfe_u32 v{vT1}, v{vL}, 2, 2
    v_and_b32 v{vT2}, 3, v{vL}
    v_and_b32 v{vT3}, 15, v{vL}
    s_mov_b32 s18, 0x10000000
    s_mov_b32 s19, 0x20000
    s_cmp_lt_u32 {R}, 8
    s_cbranch_scc1 L_service
    """)
    vKO=6; vVO=7; vQO=8; vC=9; vM=10; vLS=11; vF=12
    vSEL=13
    vQ=18
    vO=22
    vS=30
    vQR=30
    vD=52
    vKK=68
    vVV=158
    NV_ATT = 246
    g(f"""
    s_sub_u32 {R}, {R}, 8
    s_mul_i32 {B_}, {R}, 43
    s_lshr_b32 {B_}, {B_}, 8
    s_mul_i32 {TMP}, {B_}, 6
    s_sub_u32 {TMP}, {R}, {TMP}
    s_mul_i32 {TMP2}, {W}, 6
    s_add_u32 {TMP}, {TMP}, {TMP2}
    s_min_u32 {TMP2}, {TMP}, 16
    s_mul_i32 {KVOFF}, {TMP}, 21
    s_add_u32 {KVOFF}, {KVOFF}, {TMP2}
    s_lshl_b32 {TMP2}, {B_}, 3
    s_or_b32 {TMP2}, {TMP2}, {X}
    s_lshl_b32 {TMP2}, {TMP2}, 10
    s_add_u32 {KVOFF}, {KVOFF}, {TMP2}
    s_lshl_b32 {KVOFF}, {KVOFF}, 10
    s_add_u32 {OPT}, {KVOFF}, {21*1024}
    s_cmp_lt_u32 {TMP}, 16
    s_cselect_b32 {OPT}, {OPT}, 0x40000000
    s_cselect_b32 s3, 0, 0xff800000
    s_mul_i32 {SLOT}, {X}, 24
    s_add_u32 {SLOT}, {SLOT}, {R}
    v_lshlrev_b32 v{vVO}, 4, v{vL}
    v_lshlrev_b32 v{vKO}, 6, v{vT0}
    v_lshl_add_u32 v{vKO}, v{vT1}, 8, v{vKO}
    v_lshl_add_u32 v{vKO}, v{vT2}, 4, v{vKO}
    s_mov_b32 s10, 0x2000000
    s_mov_b32 s11, 0x20000
    s_mov_b32 s14, 0x2000000
    s_mov_b32 s15, 0x20000
    s_waitcnt lgkmcnt(0)
    s_mov_b32 s8, s50
    s_mov_b32 s9, s51
    s_mov_b32 s12, s52
    s_mov_b32 s13, s53
    s_mov_b32 s16, s70
    s_mov_b32 s17, s71
    s_load_dword {T}, s[70:71], {WS_EPOCH}
    """)
    def kv_load(n, base, voff, sr, sreg):
        if n == 0:
            g(f"buffer_load_dwordx4 {r4(base)}, v{voff}, {sr}, {OPT} offen {pol}")
        else:
            m = n - 1
            if m % 4 == 0: g(f"s_add_u32 {sreg}, {KVOFF}, {m*1024}")
            g(f"buffer_load_dwordx4 {r4(base+4*n)}, v{voff}, {sr}, {sreg} offen offset:{(m%4)*1024} {pol}")
    for n in range(NU): kv_load(n, vKK+2, vKO, sK, TMP)
    g.stamp(1)
    g(f"""
    v_lshlrev_b32 v{vQO}, 7, v{vT0}
    v_lshl_add_u32 v{vQO}, v{vT1}, 9, v{vQO}
    v_lshl_add_u32 v{vQO}, v{vT2}, 5, v{vQO}
    s_lshl_b32 {TMP2}, {B_}, 14
    s_lshl_b32 {TMP3}, {X}, 11
    s_add_u32 {TMP2}, {TMP2}, {TMP3}
    s_add_u32 {TMP2}, {TMP2}, {WS_QG}
    """)
    def q_loads():
        g(f"buffer_load_dwordx4 {r4(vQR)}, v{vQO}, {sWS}, {TMP2} offen sc1")
        g(f"buffer_load_dwordx4 {r4(vQR+4)}, v{vQO}, {sWS}, {TMP2} offen offset:16 sc1")
    def q_check():
        g(f"""
        v_xor_b32 v{vD}, {T}, v{vQR+1}
        v_xor_b32 v{vD+1}, {T}, v{vQR+3}
        v_xor_b32 v{vD+2}, {T}, v{vQR+5}
        v_xor_b32 v{vD+3}, {T}, v{vQR+7}
        v_or_b32 v{vD}, v{vD}, v{vD+1}
        v_or3_b32 v{vD}, v{vD}, v{vD+2}, v{vD+3}
        v_cmp_ne_u32 vcc, 0, v{vD}
        v_mov_b32 v{vQ}, v{vQR}
        v_mov_b32 v{vQ+1}, v{vQR+2}
        v_mov_b32 v{vQ+2}, v{vQR+4}
        v_mov_b32 v{vQ+3}, v{vQR+6}
        """)
    q_loads()
    for n in range(nv1): kv_load(n, vVV, vVO, sV, TMP)
    cscale = (128 ** -0.5) * math.log2(math.e)
    g(f"""
    v_mov_b32 v{vC}, {f2u(cscale):#x}
    v_mov_b32 v{vD}, 0x0c0c0c0c
    v_mov_b32 v{vD+1}, 0x0c0c0100
    v_mov_b32 v{vD+2}, 0x01000c0c
    v_mov_b32 v{vD+3}, 0x0c0c0302
    v_mov_b32 v{vD+4}, 0x03020c0c
    v_cmp_eq_u32 s[4:5], 0, v{vT2}
    v_cmp_eq_u32 s[6:7], 1, v{vT2}
    s_nop 1
    v_cndmask_b32 v{vSEL}, v{vD}, v{vD+1}, s[4:5]
    v_cndmask_b32 v{vSEL}, v{vSEL}, v{vD+2}, s[6:7]
    v_cndmask_b32 v{vSEL+1}, v{vD}, v{vD+3}, s[4:5]
    v_cndmask_b32 v{vSEL+1}, v{vSEL+1}, v{vD+4}, s[6:7]
    v_cmp_eq_u32 s[4:5], 2, v{vT2}
    v_cmp_eq_u32 s[6:7], 3, v{vT2}
    s_nop 1
    v_cndmask_b32 v{vSEL+2}, v{vD}, v{vD+1}, s[4:5]
    v_cndmask_b32 v{vSEL+2}, v{vSEL+2}, v{vD+2}, s[6:7]
    v_cndmask_b32 v{vSEL+3}, v{vD}, v{vD+3}, s[4:5]
    v_cndmask_b32 v{vSEL+3}, v{vSEL+3}, v{vD+4}, s[6:7]
    s_waitcnt lgkmcnt(0)
    s_add_u32 {T}, {T}, 1
    s_mov_b32 {CNT}, 0
    s_waitcnt vmcnt({nv1})
    """)
    q_check()
    g("s_cbranch_vccz L_qk_inter")
    for n in range(nv1, NU): kv_load(n, vVV, vVO, sV, TMP)
    g.stamp(2)
    g.label("L_qpoll")
    q_loads()
    g("s_waitcnt vmcnt(0)")
    q_check()
    pollcheck("L_qok", "L_qpoll")
    g.label("L_qok")
    g.stamp(3)
    def qk_mfma(n):
        d = vD + 4*(n % 4)
        g(f"v_mfma_f32_16x16x32_bf16 {r4(d)}, {r4(vKK+2+4*n)}, {r4(vQ)}, 0")
    def qk_red(n):
        d = vD + 4*(n % 4)
        g(f"v_mul_f32_dpp v{vS+n}, v{d}, v{vC} quad_perm:[0,0,0,0] {DPPF}")
        for b in range(1, 4):
            g(f"v_fmac_f32_dpp v{vS+n}, v{d+b}, v{vC} quad_perm:[{b},{b},{b},{b}] {DPPF}")
    def qk(inter):
        g("s_nop 1")
        qk_mfma(0); qk_mfma(1); qk_mfma(2)
        g("s_nop 5")
        nv = nv1
        for n in range(NU):
            if n + 3 < NU: qk_mfma(n+3)
            else: g("s_nop 0")
            qk_red(n)
            if inter and nv < NU and (n % 2 == 0 or NU - nv >= NU - n):
                kv_load(nv, vVV, vVO, sV, TMP); nv += 1
        while inter and nv < NU:
            kv_load(nv, vVV, vVO, sV, TMP); nv += 1
    qk(False)
    g("s_branch L_soft")
    g.label("L_qk_inter")
    g.stamp(3)
    qk(True)
    g.stamp(2)
    g.label("L_soft")
    g(f"v_add_f32 v{vS}, s3, v{vS}")
    g(f"v_max3_f32 v{vM}, v{vS+1}, v{vS+2}, v{vS+3}")
    for n in range(4, NU, 2):
        g(f"v_max3_f32 v{vM}, v{vM}, v{vS+n}, v{vS+n+1}")
    g(f"v_max_f32 v{vM}, v{vM}, v{vS}")
    def allred_rows(v, op, tmp):
        g(f"""
        v_mov_b32 v{tmp}, v{v}
        s_nop 1
        v_permlane16_swap_b32 v{v}, v{tmp}
        s_nop 1
        {op} v{v}, v{v}, v{tmp}
        v_mov_b32 v{tmp}, v{v}
        s_nop 1
        v_permlane32_swap_b32 v{v}, v{tmp}
        s_nop 1
        {op} v{v}, v{v}, v{tmp}
        """)
    allred_rows(vM, "v_max_f32", vD)
    for n in range(NU):
        g(f"v_sub_f32 v{vS+n}, v{vS+n}, v{vM}")
    for n in range(NU):
        g(f"v_exp_f32 v{vS+n}, v{vS+n}")
        g(f"v_mov_b64 {r2(vKK+4*n)}, 0")
    g(f"v_mov_b64 {r2(vKK+4*NU)}, 0")
    g(f"v_pk_add_f32 {r2(vD+12)}, {r2(vS)}, {r2(vS+2)}")
    for n in range(4, NU, 2):
        g(f"v_pk_add_f32 {r2(vD+12)}, {r2(vD+12)}, {r2(vS+n)}")
    g(f"v_add_f32 v{vLS}, v{vD+12}, v{vD+13}")
    allred_rows(vLS, "v_add_f32", vD+12)
    g(f"""
    s_lshl_b32 {TMP}, {W}, 2
    s_add_u32 {TMP}, {TMP}, {L_ST}
    v_lshl_add_u32 v{vD+12}, v{vT1}, 5, {TMP}
    s_mov_b64 exec, 0x1111
    ds_write_b32 v{vD+12}, v{vM}
    ds_write_b32 v{vD+12}, v{vLS} offset:128
    s_mov_b64 exec, -1
    """)
    for n in range(0, NU, 2):
        g(f"v_cvt_pk_bf16_f32 v{vD+n//2}, v{vS+n}, v{vS+n+1}")
    g(f"""
    s_waitcnt lgkmcnt(0)
    s_cmp_lt_u32 {W}, 4
    s_cbranch_scc1 L_nob2
    s_barrier
    """)
    g.label("L_nob2")
    for n in range(NU):
        w = vD + n//2
        g(f"v_perm_b32 v{vKK+4*n+2}, v{w}, v{w}, v{vSEL + (n&1)}")
        g(f"v_perm_b32 v{vKK+4*n+3}, v{w}, v{w}, v{vSEL + 2 + (n&1)}")
    for i in range(0, 8, 2):
        g(f"v_mov_b64 {r2(vO+i)}, 0")
    g.stamp(4)
    def fcalc():
        g(f"""
        v_lshlrev_b32 v{vD+12}, 5, v{vT0}
        v_add_u32 v{vD+13}, {TMP}, v{vD+12}
        ds_read_b128 {r4(vD)}, v{vD+12} offset:{L_ST}
        ds_read_b128 {r4(vD+4)}, v{vD+12} offset:{L_ST+16}
        ds_read_b32 v{vF}, v{vD+13}
        s_waitcnt lgkmcnt(0)
        v_max3_f32 v{vM}, v{vD}, v{vD+1}, v{vD+2}
        v_max3_f32 v{vM}, v{vM}, v{vD+3}, v{vD+4}
        v_max3_f32 v{vM}, v{vM}, v{vD+5}, v{vD+6}
        v_max_f32 v{vM}, v{vM}, v{vD+7}
        v_sub_f32 v{vF}, v{vF}, v{vM}
        v_exp_f32 v{vF}, v{vF}
        """)
    g(f"""
    s_mul_i32 {TMP2}, {W}, 2304
    s_add_u32 {TMP2}, {TMP2}, {L_OB}
    v_add_u32 v{vQO}, {TMP2}, v{vVO}
    s_cmp_lt_u32 {W}, 4
    s_cbranch_scc1 L_pv
    """)
    fcalc()
    g.label("L_pv")
    for n in range(NU):
        g(f"s_waitcnt vmcnt({NU-1-n})")
        g(f"v_mfma_f32_16x16x32_bf16 {r4(vO)}, {r4(vKK+4*n+2)}, {r4(vVV+4*n)}, {r4(vO)}")
        g(f"v_mfma_f32_16x16x32_bf16 {r4(vO+4)}, {r4(vKK+4*n)}, {r4(vVV+4*n)}, {r4(vO+4)}")
    g.stamp(5)
    g(f"""
    s_cmp_ge_u32 {W}, 4
    s_cbranch_scc1 L_owrite
    """)
    g(f"""
    v_lshrrev_b32 v{vKO}, 2, v0
    v_lshlrev_b32 v{vKO}, 4, v{vKO}
    v_and_b32 v{vD+2}, 1, v0
    v_lshl_add_u32 v{vKO}, v{vD+2}, 3, v{vKO}
    v_bfe_u32 v{vD+2}, v0, 1, 1
    v_mul_u32_u24 v{vD+2}, 1152, v{vD+2}
    v_add_u32 v{vKO}, v{vKO}, v{vD+2}
    v_lshlrev_b32 v{vC}, 2, v0
    s_lshl_b32 {TMP3}, {SLOT}, 10
    s_add_u32 {TMP3}, {TMP3}, {WS_OP}
    s_barrier
    """)
    fcalc()
    g(f"""
    s_cmp_lg_u32 {W}, 0
    s_cbranch_scc1 L_owrite
    ds_read_b128 {r4(vS)}, v{vD+12} offset:{L_ST+128}
    ds_read_b128 {r4(vS+4)}, v{vD+12} offset:{L_ST+144}
    """)
    for i in range(8): g(f"v_sub_f32 v{vD+i}, v{vD+i}, v{vM}")
    for i in range(8): g(f"v_exp_f32 v{vD+i}, v{vD+i}")
    g(f"s_waitcnt lgkmcnt(0)")
    g(f"v_mul_f32 v{vLS}, v{vD}, v{vS}")
    for i in range(1, 8): g(f"v_fmac_f32 v{vLS}, v{vD+i}, v{vS+i}")
    g(f"""
    v_lshlrev_b32 v{vD+8}, 3, v{vT0}
    s_lshl_b32 {TMP2}, {SLOT}, 7
    s_add_u32 {TMP2}, {TMP2}, {WS_ST}
    s_mov_b32 exec_lo, 0x00010001
    s_mov_b32 exec_hi, 0x00010001
    buffer_store_dwordx2 {r2(vM)}, v{vD+8}, {sWS}, {TMP2} offen sc1
    s_mov_b64 exec, -1
    """)
    g.stamp(8)
    g.label("L_owrite")
    g("s_nop 4")
    for i in range(8): g(f"v_mul_f32 v{vO+i}, v{vO+i}, v{vF}")
    g(f"""
    ds_write_b128 v{vQO}, {r4(vO)}
    ds_write_b128 v{vQO}, {r4(vO+4)} offset:1152
    s_waitcnt lgkmcnt(0)
    s_barrier
    """)
    g.stamp(6)
    g(f"""
    s_cmp_ge_u32 {W}, 4
    s_cbranch_scc1 L_fin
    """)
    for w in range(8):
        g(f"ds_read_b64 {r2(vS+2*w)}, v{vKO} offset:{L_OB+2304*w}")
    g(f"""
    s_waitcnt lgkmcnt(6)
    v_pk_add_f32 {r2(vS)}, {r2(vS)}, {r2(vS+2)}
    s_waitcnt lgkmcnt(4)
    v_pk_add_f32 {r2(vS+4)}, {r2(vS+4)}, {r2(vS+6)}
    s_waitcnt lgkmcnt(2)
    v_pk_add_f32 {r2(vS+8)}, {r2(vS+8)}, {r2(vS+10)}
    v_pk_add_f32 {r2(vS)}, {r2(vS)}, {r2(vS+4)}
    s_waitcnt lgkmcnt(0)
    v_pk_add_f32 {r2(vS+12)}, {r2(vS+12)}, {r2(vS+14)}
    v_pk_add_f32 {r2(vS)}, {r2(vS)}, {r2(vS+8)}
    v_pk_add_f32 {r2(vS)}, {r2(vS)}, {r2(vS+12)}
    v_cvt_pk_bf16_f32 v{vS}, v{vS}, v{vS+1}
    buffer_store_dword v{vS}, v{vC}, {sWS}, {TMP3} offen sc1
    """ if not stamps else f"""
    s_waitcnt lgkmcnt(0)
    v_pk_add_f32 {r2(vS)}, {r2(vS)}, {r2(vS+2)}
    v_pk_add_f32 {r2(vS+4)}, {r2(vS+4)}, {r2(vS+6)}
    v_pk_add_f32 {r2(vS+8)}, {r2(vS+8)}, {r2(vS+10)}
    v_pk_add_f32 {r2(vS)}, {r2(vS)}, {r2(vS+4)}
    v_pk_add_f32 {r2(vS+12)}, {r2(vS+12)}, {r2(vS+14)}
    v_pk_add_f32 {r2(vS)}, {r2(vS)}, {r2(vS+8)}
    v_pk_add_f32 {r2(vS)}, {r2(vS)}, {r2(vS+12)}
    v_cvt_pk_bf16_f32 v{vS}, v{vS}, v{vS+1}
    buffer_store_dword v{vS}, v{vC}, {sWS}, {TMP3} offen sc1
    """)
    g.stamp(7)
    g.label("L_fin")
    if dbg:
        g.stamp(13)
        srd(20, 68, 256)
        g(f"""
        s_waitcnt lgkmcnt(0)
        s_mov_b64 exec, 1
        v_mov_b32 v99, 0
        s_not_b32 {TMP}, s72
        v_mov_b32 v100, {TMP}
        buffer_atomic_umax v100, v99, {sWA}, 0 offen
        v_mov_b32 v101, s72
        buffer_atomic_umax v101, v99, {sWA}, 0 offen offset:4
        v_mov_b32 v102, s98
        buffer_atomic_umax v102, v99, {sWA}, 0 offen offset:8
        s_cmp_lt_u32 s2, 64
        s_cbranch_scc1 L_dbg_svc
        """)
        for k, st in enumerate((1, 3, 7)):
            g(f"v_mov_b32 v{103+k}, s{72+2*st}\nbuffer_atomic_umax v{103+k}, v99, {sWA}, 0 offen offset:{12+4*k}")
        g("s_branch L_end")
        g.label("L_dbg_svc")
        for k, st in enumerate((1, 2, 3, 5, 6, 7, 8, 9)):
            g(f"v_mov_b32 v{103+k}, s{72+2*st}\nbuffer_atomic_umax v{103+k}, v99, {sWA}, 0 offen offset:{24+4*k}")
    elif stamps:
        g.stamp(13)
        g(f"""
        s_waitcnt lgkmcnt(0)
        s_lshl_b32 {TMP2}, s2, 3
        s_add_u32 {TMP2}, {TMP2}, {W}
        s_lshl_b32 {TMP2}, {TMP2}, 7
        s_add_u32 {TMP2}, {TMP2}, {WS_STAMP}
        s_mov_b64 exec, -1
        """)
        for i in range(28): g(f"v_mov_b32 v{100+i}, s{72+i}")
        g(f"v_mov_b32 v99, 0\ns_mov_b64 exec, 1")
        for i in range(7): g(f"buffer_store_dwordx4 {r4(100+4*i)}, v99, {sWS}, {TMP2} offen offset:{16*i}")
    g.label("L_end")
    g("s_endpgm")

    vA128=6
    vTR=7
    vTR64=11
    vU=12
    vWT=28
    vA=36
    vD2=52
    vWO=88
    vGU=120
    vWD=152
    vP=168
    vXF=216
    vCS=224
    g.label("L_service")
    g(f"""
    v_lshrrev_b32 v{vU}, 3, v{vL}
    v_and_b32 v{vU+1}, 7, v{vL}
    v_and_b32 v{vU+2}, 2, v{vU}
    v_xor_b32 v{vU+1}, v{vU+1}, v{vU+2}
    v_xor_b32 v{vU+2}, 4, v{vU+1}
    v_lshlrev_b32 v{vU+1}, 4, v{vU+1}
    v_lshlrev_b32 v{vU+2}, 4, v{vU+2}
    v_lshl_add_u32 v{vU+3}, v{vU}, 13, v{vU+1}
    v_lshl_add_u32 v{vU+4}, v{vU}, 13, v{vU+2}
    v_lshl_add_u32 v{vU+5}, v{vU}, 10, v{vU+1}
    v_lshl_add_u32 v{vU+6}, v{vU}, 10, v{vU+2}
    s_lshl_b32 {LW}, {W}, 14
    s_add_u32 {LW}, {LW}, {L_W}
    s_lshl_b32 {TMP2}, {X}, 10
    s_lshl_b32 {TMP3}, {NS}, 7
    s_add_u32 {TMP2}, {TMP2}, {TMP3}
    s_lshl_b32 {TMP3}, {W}, 19
    s_add_u32 {TMP2}, {TMP2}, {TMP3}
    s_mov_b32 {TMP3}, {LW}
    s_waitcnt lgkmcnt(0)
    s_mov_b32 s16, s70
    s_mov_b32 s17, s71
    s_load_dword {T}, s[70:71], {WS_EPOCH}
    """)
    srd(20, 54, 0x400000)
    srd(28, 48, 4096)
    vOFFQ = (vU+3, vU+4); vOFF1K = (vU+5, vU+6)
    for i in range(8): g(f"v_mov_b32 v{vA+i}, 0x3f803f80")
    g(f"""
    v_lshlrev_b32 v{vU+7}, 10, v{vT2}
    v_lshl_add_u32 v{vU+7}, v{vT0}, 4, v{vU+7}
    s_lshl_b32 {TMP}, {W}, 7
    s_mov_b32 exec_lo, 0x000f000f
    s_mov_b32 exec_hi, 0x000f000f
    buffer_load_dwordx4 {r4(vA)}, v{vU+7}, {sXS}, {TMP} offen
    buffer_load_dwordx4 {r4(vA+4)}, v{vU+7}, {sXS}, {TMP} offen offset:64
    s_mov_b64 exec, -1
    """)
    for i in range(8):
        g(f"""
        s_mov_b32 m0, {TMP3}
        s_add_u32 {TMP3}, {TMP3}, 1024
        buffer_load_dwordx4 v{vOFFQ[i&1]}, {sWA}, {TMP2} offen {wpol} lds
        s_add_u32 {TMP2}, {TMP2}, {8*8192}
        """)
    g("s_barrier")
    g(f"""
    v_mov_b32 v{vP}, -1
    v_mov_b32 v{vP+1}, -1
    v_mov_b32 v{vP+2}, -1
    v_mov_b32 v{vP+3}, -1
    v_lshlrev_b32 v{vU+8}, 4, v{vL}
    s_mul_i32 {JF}, {X}, 7
    s_add_u32 {JF}, {JF}, {NS}
    s_lshl_b32 {TMP2}, {JF}, 13
    s_lshl_b32 {TMP}, {W}, 10
    s_add_u32 {TMP2}, {TMP2}, {TMP}
    s_add_u32 {TMP2}, {TMP2}, {WS_DP}
    s_cmp_eq_u32 {NS}, 7
    s_cselect_b32 {TMP2}, 0x40000000, {TMP2}
    buffer_store_dwordx4 {r4(vP)}, v{vU+8}, {sWS}, {TMP2} offen sc1
    s_lshl_b32 {TMP}, {X}, 3
    s_add_u32 {TMP}, {TMP}, {NS}
    s_mul_i32 {TMP}, {TMP}, 3
    s_add_u32 {TMP2}, {TMP}, {W}
    s_lshl_b32 {TMP2}, {TMP2}, 10
    s_add_u32 {TMP2}, {TMP2}, {WS_OP}
    s_cmp_lt_u32 {W}, 3
    s_cbranch_scc1 L_clr_go
    s_lshl_b32 {TMP2}, {TMP}, 7
    s_add_u32 {TMP2}, {TMP2}, {WS_ST}
    s_mov_b64 exec, 0xffffff
    s_cmp_eq_u32 {W}, 3
    s_cbranch_scc1 L_clr_go
    s_sub_u32 {TMP2}, {W}, 4
    s_lshl_b32 {TMP2}, {TMP2}, 11
    s_lshl_b32 {TMP}, {X}, 13
    s_add_u32 {TMP2}, {TMP2}, {TMP}
    s_lshl_b32 {TMP}, {NS}, 8
    s_add_u32 {TMP2}, {TMP2}, {TMP}
    s_add_u32 {TMP2}, {TMP2}, {WS_AP}
    s_mov_b64 exec, 0xffff
    """)
    g.label("L_clr_go")
    g(f"""
    buffer_store_dwordx4 {r4(vP)}, v{vU+8}, {sWS}, {TMP2} offen sc1
    s_mov_b64 exec, -1
    """)
    srd(24, 56, 0x400000)
    g(f"""
    s_lshl_b32 {TMP2}, {X}, 19
    s_lshl_b32 {TMP}, {W}, 16
    s_add_u32 {TMP2}, {TMP2}, {TMP}
    s_lshl_b32 {TMP}, {NS}, 7
    s_add_u32 {TMP2}, {TMP2}, {TMP}
    """)
    def wo_dma(i):
        g(f"""
        s_mov_b32 m0, {TMP3}
        s_add_u32 {TMP3}, {TMP3}, 1024
        buffer_load_dwordx4 v{vOFF1K[i&1]}, {sWB}, {TMP2} offen {wpol} lds
        s_add_u32 {TMP2}, {TMP2}, {8*1024}
        """)
    for i in range(4): wo_dma(i)
    g(f"""
    v_lshrrev_b32 v{vU+9}, 1, v{vT1}
    v_and_b32 v{vU+10}, 1, v{vT0}
    v_lshl_or_b32 v{vU+9}, v{vU+10}, 1, v{vU+9}
    v_lshlrev_b32 v{vU+10}, 10, v{vT0}
    v_lshl_add_u32 v{vU+10}, v{vT1}, 7, v{vU+10}
    v_lshl_add_u32 v{vU+10}, v{vT2}, 3, v{vU+10}
    v_add_u32 v{vU+10}, {LW}, v{vU+10}
    """)
    for nt in range(4):
        g(f"v_xor_b32 v{vU+11}, {nt}, v{vU+9}")
        g(f"v_lshl_add_u32 v{vTR+nt}, v{vU+11}, 5, v{vU+10}")
    def tr128(dst, nt, off):
        g(f"ds_read_b64_tr_b16 {r2(dst)}, v{vTR+nt} offset:{off}")
        g(f"ds_read_b64_tr_b16 {r2(dst+2)}, v{vTR+nt} offset:{off+512}")
    g(f"""
    v_mul_u32_u24 v{vU+12}, 10240, v{vT0}
    v_lshl_add_u32 v{vU+12}, v{vT3}, 4, v{vU+12}
    s_lshl_b32 {TMP}, {W}, 8
    s_add_u32 {TMP}, {TMP}, {L_R}
    v_add_u32 v{vU+12}, {TMP}, v{vU+12}
    s_waitcnt vmcnt(6) lgkmcnt(0)
    s_add_u32 {T}, {T}, 1
    """)
    g.stamp(1)
    if stamps: g("s_waitcnt lgkmcnt(0)")
    vRW = vU+12
    for kt in range(2):
        for nt in range(4):
            tr128(vGU+16*kt+4*nt, nt, 4096*kt)
    g(f"v_mfma_f32_16x16x32_bf16 {r4(vD2+16)}, {r4(vA)}, {r4(vA)}, 0")
    g(f"v_mfma_f32_16x16x32_bf16 {r4(vD2+16)}, {r4(vA+4)}, {r4(vA+4)}, {r4(vD2+16)}")
    for kt in range(2):
        g(f"s_waitcnt lgkmcnt({8*(1-kt)})")
        for nt in range(4):
            g(f"v_mfma_f32_16x16x32_bf16 {r4(vD2+4*nt)}, {r4(vA+4*kt)}, {r4(vGU+16*kt+4*nt)}, {'0' if kt == 0 else r4(vD2+4*nt)}")
    for i in range(4, 8): wo_dma(i)
    g("s_mov_b32 exec_hi, 0")
    for t in (4, 0, 1, 2, 3):
        g(f"ds_write_b128 v{vRW}, {r4(vD2+4*t)} offset:{2048*t}")
    g(f"""
    s_mov_b32 exec_hi, -1
    s_waitcnt vmcnt(8) lgkmcnt(0)
    s_barrier
    s_cmp_ge_u32 {W}, 4
    s_cbranch_scc1 L_qdone
    """)
    def read8(dst, addr, unit0):
        for i in range(4):
            g(f"ds_read2st64_b32 {r2(dst+2*i)}, v{addr} offset0:{unit0+2*i} offset1:{unit0+2*i+1}")
    def sum8(bases):
        for b in bases:
            g(f"v_pk_add_f32 {r2(b)}, {r2(b)}, {r2(b+2)}")
            g(f"v_pk_add_f32 {r2(b+4)}, {r2(b+4)}, {r2(b+6)}")
        for b in bases: g(f"v_pk_add_f32 {r2(b)}, {r2(b)}, {r2(b+4)}")
        for b in bases: g(f"v_add_f32 v{b}, v{b}, v{b+1}")
    def ln_stats(S1, S2):
        g(f"""
        v_mul_f32 v{S1}, {f2u(1/512):#x}, v{S1}
        v_mul_f32 v{S2}, {f2u(1/512):#x}, v{S2}
        v_fma_f32 v{S2}, -v{S1}, v{S1}, v{S2}
        v_max_f32 v{S2}, 0, v{S2}
        v_add_f32 v{S2}, {f2u(1e-5):#x}, v{S2}
        v_rsq_f32 v{S2}, v{S2}
        """)
    g(f"""
    v_lshlrev_b32 v{vU}, 11, v{vT0}
    v_lshl_add_u32 v{vU}, v{vT3}, 4, v{vU}
    v_add_u32 v{vU}, {L_R}, v{vU}
    s_lshl_b32 {TMP}, {W}, 2
    v_add_u32 v{vU+1}, {TMP}, v{vU}
    s_mul_i32 {TMP2}, {W}, 20
    s_add_u32 {TMP2}, {TMP2}, {L_R+8192}
    v_mov_b32 v{vU+2}, {TMP2}
    s_add_u32 {TMP}, {TMP}, {L_R+8192+64}
    v_mov_b32 v{vU+7}, {TMP}
    """)
    read8(vP, vU+1, 0); read8(vP+8, vU, 40); read8(vP+16, vU+7, 0); read8(vP+24, vU+2, 0)
    g("s_waitcnt lgkmcnt(0)")
    sum8([vP, vP+8, vP+16, vP+24])
    ln_stats(vP+16, vP+24)
    g(f"""
    v_fma_f32 v{vP}, -v{vP+16}, v{vP+8}, v{vP}
    v_mul_f32 v{vP}, v{vP}, v{vP+24}
    s_lshl_b32 {TMP2}, {W}, 14
    s_lshl_b32 {TMP}, {X}, 11
    v_mov_b32_dpp v{vP+1}, v{vP} quad_perm:[1,1,3,3] {DPPF}
    s_add_u32 {TMP2}, {TMP2}, {TMP}
    s_lshl_b32 {TMP}, {NS}, 8
    s_add_u32 {TMP2}, {TMP2}, {TMP}
    s_add_u32 {TMP2}, {TMP2}, {WS_QG}
    v_cvt_pk_bf16_f32 v{vP}, v{vP}, v{vP+1}
    v_mov_b32 v{vP+1}, {T}
    v_lshlrev_b32 v{vU}, 2, v{vL}
    s_mov_b32 exec_lo, 0x55555555
    s_mov_b32 exec_hi, 0x55555555
    buffer_store_dwordx2 {r2(vP)}, v{vU}, {sWS}, {TMP2} offen sc1
    s_mov_b64 exec, 1
    s_lshl_b32 {TMP2}, {X}, 3
    s_add_u32 {TMP2}, {TMP2}, {NS}
    s_lshl_b32 {TMP2}, {TMP2}, 2
    s_add_u32 {TMP2}, {TMP2}, {WS_READY}
    s_cmp_lg_u32 {W}, 0
    s_cselect_b32 {TMP2}, 0x40000000, {TMP2}
    buffer_store_dword v{vP+1}, v{vU}, {sWS}, {TMP2} offen sc1
    s_mov_b64 exec, -1
    """)
    g.label("L_qdone")
    g.stamp(2)
    g(f"""
    s_cmp_eq_u32 {NS}, 7
    s_cbranch_scc1 L_nogu
    """)
    srd(20, 60, 512*3584)
    srd(24, 62, 512*3584)
    g(f"""
    v_lshrrev_b32 v{vU}, 2, v{vL}
    v_mul_u32_u24 v{vU}, 3584, v{vU}
    v_lshl_add_u32 v{vU}, v{vT2}, 4, v{vU}
    s_lshl_b32 {TMP2}, {JF}, 6
    s_mul_i32 {TMP}, {W}, {64*3584}
    s_add_u32 {TMP2}, {TMP2}, {TMP}
    s_mov_b32 {TMP3}, {LW}
    """)
    for i in range(4):
        g(f"""
        s_mov_b32 m0, {TMP3}
        s_add_u32 {TMP3}, {TMP3}, 4096
        buffer_load_dwordx4 v{vU}, {sWA}, {TMP2} offen {wpol} lds
        s_mov_b32 m0, {TMP3}
        s_sub_u32 {TMP3}, {TMP3}, {4096-1024}
        buffer_load_dwordx4 v{vU}, {sWB}, {TMP2} offen {wpol} lds
        s_add_u32 {TMP2}, {TMP2}, {16*3584}
        """)
    g("s_waitcnt vmcnt(8)")
    g("s_branch L_wo_rd")
    g.label("L_nogu")
    g("s_waitcnt vmcnt(0)")
    g.label("L_wo_rd")
    for kt in range(2):
        for nt in range(4):
            tr128(vWO+16*kt+4*nt, nt, 8192+4096*kt)
    g(f"""
    s_waitcnt lgkmcnt(0)
    s_cmp_eq_u32 {NS}, 7
    s_cbranch_scc1 L_wdone
    """)
    srd(20, 64, 1792*1024)
    g(f"""
    s_lshl_b32 {TMP2}, {JF}, 15
    s_lshl_b32 {TMP}, {W}, 7
    s_add_u32 {TMP2}, {TMP2}, {TMP}
    s_add_u32 {TMP3}, {LW}, 8192
    """)
    for i in range(4):
        g(f"""
        s_mov_b32 m0, {TMP3}
        s_add_u32 {TMP3}, {TMP3}, 1024
        buffer_load_dwordx4 v{vOFF1K[i&1]}, {sWA}, {TMP2} offen {wpol} lds
        s_add_u32 {TMP2}, {TMP2}, {8*1024}
        """)
    g(f"""
    v_lshlrev_b32 v{vU}, 10, v{vT0}
    v_lshl_add_u32 v{vU}, v{vT3}, 3, v{vU}
    s_lshl_b32 {TMP2}, {W}, 7
    buffer_load_dwordx2 {r2(vXF)}, v{vU}, {sXS}, {TMP2} offen
    v_lshlrev_b32 v{vTR64}, 9, v{vT0}
    v_lshl_add_u32 v{vTR64}, v{vT1}, 6, v{vTR64}
    v_lshl_add_u32 v{vTR64}, v{vT2}, 3, v{vTR64}
    v_add_u32 v{vTR64}, {LW}, v{vTR64}
    s_waitcnt vmcnt(5)
    """)
    for kt in range(2):
        for nt in range(4):
            off = 4096*(nt >> 1) + 2048*kt + 32*(nt & 1)
            g(f"ds_read_b64_tr_b16 {r2(vGU+16*kt+4*nt)}, v{vTR64} offset:{off}")
            g(f"ds_read_b64_tr_b16 {r2(vGU+16*kt+4*nt+2)}, v{vTR64} offset:{off+256}")
    g("s_waitcnt vmcnt(0) lgkmcnt(0)")
    for nt in range(4): tr128(vWD+4*nt, nt, 8192)
    g(f"""
    v_lshlrev_b32 v{vXF+4}, 16, v{vXF}
    v_and_b32 v{vXF+5}, 0xffff0000, v{vXF}
    v_lshlrev_b32 v{vXF+6}, 16, v{vXF+1}
    v_and_b32 v{vXF+7}, 0xffff0000, v{vXF+1}
    """)
    g(f"""
    s_mul_i32 {TMP}, {W}, 768
    s_add_u32 {TMP}, {TMP}, {L_HT}
    v_mov_b32 v{vU}, 0x3f803f80
    v_mov_b32 v{vU+1}, 0x3f803f80
    v_lshl_add_u32 v{vU+2}, v{vT3}, 3, {TMP}
    ds_write_b64 v{vU+2}, {r2(vU)} offset:576
    v_mov_b32 v{vU}, 0
    v_lshlrev_b32 v{vU+2}, 2, v{vT3}
    ds_write_b32 v{vU+2}, v{vU} offset:{L_ACT+320}
    s_waitcnt lgkmcnt(0)
    """)
    g.label("L_wdone")
    g.stamp(3)
    g(f"""
    v_lshlrev_b32 v{vU}, 2, v{vL}
    s_mov_b32 {CNT}, 0
    s_mov_b32 {TMP2}, {WS_READY}
    """)
    g.label("L_rpoll")
    g(f"""
    buffer_load_dword v{vU+1}, v{vU}, {sWS}, {TMP2} offen sc1
    s_waitcnt vmcnt(0)
    v_cmp_ne_u32 vcc, {T}, v{vU+1}
    """)
    pollcheck("L_rdone", "L_rpoll")
    g.label("L_rdone")
    g(f"""
    v_and_b32 v{vU}, 7, v{vL}
    v_cmp_gt_u32 s[4:5], 6, v{vU}
    v_min_u32 v{vU}, 5, v{vU}
    v_bfe_u32 v{vU+1}, v{vL}, 3, 2
    v_mad_u32_u24 v{vU+2}, v{vU+1}, 6, v{vU}
    v_lshlrev_b32 v{vU+2}, 7, v{vU+2}
    v_bfe_u32 v{vU+1}, v{vL}, 3, 1
    v_mad_u32_u24 v{vU+3}, v{vU+1}, 6, v{vU}
    v_lshlrev_b32 v{vU+3}, 10, v{vU+3}
    v_lshl_add_u32 v{vU+3}, v{vT0}, 4, v{vU+3}
    s_mul_i32 {TMP2}, {X}, {24*128}
    s_lshr_b32 {TMP3}, {W}, 1
    s_lshl_b32 {TMP3}, {TMP3}, 3
    s_add_u32 {TMP2}, {TMP2}, {TMP3}
    s_add_u32 {TMP2}, {TMP2}, {WS_ST}
    s_mov_b32 {CNT}, 0
    """)
    g.label("L_spoll")
    g(f"""
    buffer_load_dwordx2 {r2(vU+4)}, v{vU+2}, {sWS}, {TMP2} offen sc1
    s_waitcnt vmcnt(0)
    v_max_u32 v{vU+6}, v{vU+4}, v{vU+5}
    v_cmp_eq_u32 vcc, -1, v{vU+6}
    """)
    pollcheck("L_sok", "L_spoll")
    g.label("L_sok")
    g.stamp(4)
    g(f"""
    s_mul_i32 {TMP2}, {X}, {24*1024}
    s_lshl_b32 {TMP3}, {W}, 7
    s_add_u32 {TMP2}, {TMP2}, {TMP3}
    s_add_u32 {TMP2}, {TMP2}, {WS_OP}
    s_add_u32 {TMP3}, {TMP2}, {12*1024}
    """)
    def op_loads():
        g(f"""
        buffer_load_dwordx4 {r4(vA)}, v{vU+3}, {sWS}, {TMP2} offen sc1
        buffer_load_dwordx4 {r4(vA+4)}, v{vU+3}, {sWS}, {TMP2} offen offset:64 sc1
        buffer_load_dwordx4 {r4(vA+8)}, v{vU+3}, {sWS}, {TMP3} offen sc1
        buffer_load_dwordx4 {r4(vA+12)}, v{vU+3}, {sWS}, {TMP3} offen offset:64 sc1
        """)
    op_loads()
    def red8(dst, op):
        for ctl in ("quad_perm:[1,0,3,2]", "quad_perm:[2,3,0,1]", "row_half_mirror"):
            g(f"s_nop 1\n{op}_dpp v{dst}, v{dst}, v{dst} {ctl} {DPPF}")
    g(f"v_mov_b32 v{vU+6}, v{vU+4}")
    red8(vU+6, "v_max_f32")
    g(f"""
    v_sub_f32 v{vU+6}, v{vU+4}, v{vU+6}
    v_exp_f32 v{vU+6}, v{vU+6}
    s_nop 0
    v_cndmask_b32 v{vU+6}, 0, v{vU+6}, s[4:5]
    v_mul_f32 v{vU+7}, v{vU+6}, v{vU+5}
    """)
    red8(vU+7, "v_add_f32")
    g(f"""
    v_rcp_f32 v{vU+7}, v{vU+7}
    s_lshl_b32 {TMP}, {W}, 7
    s_add_u32 {TMP}, {TMP}, {L_WT}
    v_mul_f32 v{vU+6}, v{vU+6}, v{vU+7}
    v_and_b32 v{vU+8}, 31, v{vL}
    v_lshl_add_u32 v{vU+8}, v{vU+8}, 2, {TMP}
    v_lshl_add_u32 v{vU+9}, v{vT0}, 4, {TMP}
    ds_write_b32 v{vU+8}, v{vU+6}
    s_waitcnt lgkmcnt(0)
    ds_read_b128 {r4(vWT)}, v{vU+9}
    ds_read_b128 {r4(vWT+4)}, v{vU+9} offset:64
    """)
    g(f"""
    v_lshrrev_b32 v{vU+8}, 1, v{vT0}
    v_lshl_add_u32 v{vU+8}, v{vU+8}, 6, v{vT3}
    v_mul_u32_u24 v{vU+8}, 80, v{vU+8}
    v_and_b32 v{vU+9}, 1, v{vT0}
    v_lshl_add_u32 v{vU+8}, v{vU+9}, 2, v{vU+8}
    s_lshl_b32 {TMP}, {W}, 3
    s_add_u32 {TMP}, {TMP}, {L_R}
    v_add_u32 v{vU+8}, {TMP}, v{vU+8}
    v_mul_u32_u24 v{vU+9}, 80, v0
    v_lshlrev_b32 v{vU+10}, 2, v{vL}
    s_mov_b32 {CNT}, 0
    s_branch L_ochk
    """)
    g.label("L_opoll")
    op_loads()
    g.label("L_ochk")
    g("s_waitcnt vmcnt(0)")
    sentinel_check(vA, 16, vU+11)
    pollcheck("L_ook", "L_opoll")
    g.label("L_ook")
    g.stamp(5)
    g("s_waitcnt lgkmcnt(0)")
    seq = [(t, nt) for t in range(2) for nt in range(4)]
    def o_mfma(i):
        t, nt = seq[i]; d = vD2 + 4*i
        g(f"v_mfma_f32_16x16x32_bf16 {r4(d)}, {r4(vA+8*t)}, {r4(vWO+4*nt)}, 0")
        g(f"v_mfma_f32_16x16x32_bf16 {r4(d)}, {r4(vA+8*t+4)}, {r4(vWO+16+4*nt)}, {r4(d)}")
    def o_post(i):
        t, nt = seq[i]; d = vD2 + 4*i
        g(f"v_pk_mul_f32 {r2(d)}, {r2(d)}, {r2(vWT+4*t)}")
        g(f"v_pk_fma_f32 {r2(d)}, {r2(d+2)}, {r2(vWT+4*t+2)}, {r2(d)}")
        g(f"v_add_f32 v{d}, v{d}, v{d+1}")
        g(f"ds_write_b32 v{vU+8}, v{d} offset:{(t*128+nt*16)*80}")
    o_mfma(0); o_mfma(1); o_mfma(2)
    g("s_nop 1")
    for i in range(8):
        if i + 3 < 8: o_mfma(i+3)
        else: g("s_nop 1")
        o_post(i)
    g(f"""
    s_lshl_b32 {TMP2}, {X}, 13
    s_lshl_b32 {TMP}, {W}, 11
    s_add_u32 {TMP2}, {TMP2}, {TMP}
    s_lshl_b32 {TMP}, {NS}, 8
    s_add_u32 {TMP2}, {TMP2}, {TMP}
    s_add_u32 {TMP2}, {TMP2}, {WS_AP}
    s_waitcnt lgkmcnt(0)
    s_barrier
    s_cmp_ge_u32 {W}, 4
    s_cbranch_scc1 L_h2
    """)
    for i in range(4): g(f"ds_read_b128 {r4(vP+4*i)}, v{vU+9} offset:{L_R+16*i}")
    g("s_waitcnt lgkmcnt(0)")
    g(f"""
    v_pk_add_f32 {r2(vP)}, {r2(vP)}, {r2(vP+2)}
    v_pk_add_f32 {r2(vP+4)}, {r2(vP+4)}, {r2(vP+6)}
    v_pk_add_f32 {r2(vP+8)}, {r2(vP+8)}, {r2(vP+10)}
    v_pk_add_f32 {r2(vP+12)}, {r2(vP+12)}, {r2(vP+14)}
    v_pk_add_f32 {r2(vP)}, {r2(vP)}, {r2(vP+4)}
    v_pk_add_f32 {r2(vP+8)}, {r2(vP+8)}, {r2(vP+12)}
    v_pk_add_f32 {r2(vP)}, {r2(vP)}, {r2(vP+8)}
    v_add_f32 v{vP}, v{vP}, v{vP+1}
    buffer_store_dword v{vP}, v{vU+10}, {sWS}, {TMP2} offen sc1
    """)
    g.label("L_h2")
    g.stamp(6)
    g(f"""
    s_cmp_eq_u32 {NS}, 7
    s_cbranch_scc1 L_final
    """)
    g(f"""
    v_lshlrev_b32 v{vU}, 11, v{vT0}
    v_lshl_add_u32 v{vU}, v{vT3}, 4, v{vU}
    s_lshl_b32 {TMP2}, {W}, 8
    s_add_u32 {TMP2}, {TMP2}, {WS_AP}
    s_mul_i32 {TMP}, {W}, 768
    s_add_u32 {TMP}, {TMP}, {L_HT}
    v_mul_u32_u24 v{vU+1}, 144, v{vT0}
    v_lshl_add_u32 v{vU+1}, v{vT3}, 3, v{vU+1}
    v_add_u32 v{vU+1}, {TMP}, v{vU+1}
    v_min_u32 v{vU+2}, 4, v{vT3}
    v_mul_u32_u24 v{vU+2}, 144, v{vU+2}
    v_lshl_add_u32 v{vU+2}, v{vT0}, 4, v{vU+2}
    v_add_u32 v{vU+2}, {TMP}, v{vU+2}
    s_mov_b32 {CNT}, 0
    s_barrier
    """)
    g.label("L_apoll")
    for xx in range(8):
        if xx: g(f"s_add_u32 {TMP3}, {TMP2}, {8192*xx}")
        g(f"buffer_load_dwordx4 {r4(vP+4*xx)}, v{vU}, {sWS}, {TMP3 if xx else TMP2} offen sc1")
    g("s_waitcnt vmcnt(0)")
    sentinel_check(vP, 32, vU+11)
    pollcheck("L_aok", "L_apoll")
    g.label("L_aok")
    g.stamp(7)
    for st in (4, 8, 16):
        for i in range(0, 32, 2*st):
            g(f"v_pk_add_f32 {r2(vP+i)}, {r2(vP+i)}, {r2(vP+i+st)}")
            g(f"v_pk_add_f32 {r2(vP+i+2)}, {r2(vP+i+2)}, {r2(vP+i+st+2)}")
    g(f"""
    v_pk_add_f32 {r2(vP)}, {r2(vP)}, {r2(vXF+4)}
    v_pk_add_f32 {r2(vP+2)}, {r2(vP+2)}, {r2(vXF+6)}
    v_cvt_pk_bf16_f32 v{vP+4}, v{vP}, v{vP+1}
    v_cvt_pk_bf16_f32 v{vP+5}, v{vP+2}, v{vP+3}
    ds_write_b64 v{vU+1}, {r2(vP+4)}
    s_waitcnt lgkmcnt(0)
    ds_read_b128 {r4(vA)}, v{vU+2}
    ds_read_b128 {r4(vA+4)}, v{vU+2} offset:64
    """)
    g(f"""
    v_bfe_u32 v{vU+3}, v0, 4, 1
    v_lshlrev_b32 v{vU+3}, 11, v{vU+3}
    v_lshl_add_u32 v{vU+3}, v{vT3}, 4, v{vU+3}
    v_add_u32 v{vU+3}, {L_R}, v{vU+3}
    v_bfe_u32 v{vU+4}, v0, 5, 2
    v_lshl_add_u32 v{vU+5}, v{vU+4}, 2, v{vU+3}
    v_mul_u32_u24 v{vU+6}, 20, v{vU+4}
    v_add_u32 v{vU+6}, {L_R+8192}, v{vU+6}
    v_lshlrev_b32 v{vU+7}, 2, v{vU+4}
    v_add_u32 v{vU+7}, {L_R+8192+64}, v{vU+7}
    s_waitcnt lgkmcnt(0)
    """)
    for kt in range(2):
        for nt in range(4):
            g(f"v_mfma_f32_16x16x32_bf16 {r4(vD2+4*nt)}, {r4(vA+4*kt)}, {r4(vGU+16*kt+4*nt)}, {'0' if kt == 0 else r4(vD2+4*nt)}")
        g(f"v_mfma_f32_16x16x32_bf16 {r4(vD2+16)}, {r4(vA+4*kt)}, {r4(vA+4*kt)}, {'0' if kt == 0 else r4(vD2+16)}")
    g(f"""
    v_mul_u32_u24 v{vU+8}, 80, v{vU+4}
    v_and_b32 v{vU+9}, 31, v0
    v_lshl_add_u32 v{vU+8}, v{vU+9}, 1, v{vU+8}
    s_mov_b32 exec_hi, 0
    """)
    for t in range(5):
        g(f"ds_write_b128 v{vRW}, {r4(vD2+4*t)} offset:{2048*t}")
        if t == 3: g("s_nop 0")
    g(f"""
    s_mov_b32 exec_hi, -1
    v_mul_u32_u24 v{vU+9}, 80, v{vT2}
    v_lshl_add_u32 v{vU+9}, v{vT0}, 4, v{vU+9}
    v_mov_b32 v{vU+10}, 320
    """)
    for t in range(4):
        g(f"v_cmp_eq_u32 vcc, {t}, v{vT1}\ns_nop 1\nv_cndmask_b32 v{vCS+t}, v{vU+10}, v{vU+9}, vcc")
    g(f"""
    s_waitcnt lgkmcnt(0)
    s_barrier
    s_cmp_ge_u32 {W}, 2
    s_cbranch_scc1 L_act_done
    """)
    read8(vP+16, vU+7, 0); read8(vP+24, vU+6, 0)
    read8(vP, vU+5, 0); read8(vP+8, vU+5, 16); read8(vP+32, vU+3, 40); read8(vP+40, vU+3, 56)
    g("s_waitcnt lgkmcnt(0)")
    sum8([vP+16, vP+24, vP, vP+8, vP+32, vP+40])
    Gv, Uv, S1, S2, CG, CU = vP, vP+8, vP+16, vP+24, vP+32, vP+40
    ln_stats(S1, S2)
    g(f"""
    v_fma_f32 v{Gv}, -v{S1}, v{CG}, v{Gv}
    v_fma_f32 v{Uv}, -v{S1}, v{CU}, v{Uv}
    v_mul_f32 v{Gv}, v{Gv}, v{S2}
    v_mul_f32 v{Uv}, v{Uv}, v{S2}
    v_mul_f32 v{CG}, {f2u(-math.log2(math.e)):#x}, v{Gv}
    v_exp_f32 v{CG}, v{CG}
    v_mul_f32 v{Uv}, v{Uv}, v{Gv}
    v_add_f32 v{CG}, 1.0, v{CG}
    v_rcp_f32 v{CG}, v{CG}
    s_nop 0
    v_mul_f32 v{Uv}, v{Uv}, v{CG}
    v_cvt_pk_bf16_f32 v{Uv}, v{Uv}, v{Uv}
    ds_write_b16 v{vU+8}, v{Uv} offset:{L_ACT}
    s_waitcnt lgkmcnt(0)
    """)
    g.label("L_act_done")
    g("s_barrier")
    g.stamp(8)
    for t in range(4): g(f"ds_read_b128 {r4(vA+4*t)}, v{vCS+t} offset:{L_ACT}")
    g(f"""
    v_lshlrev_b32 v{vU}, 11, v{vT2}
    v_lshl_add_u32 v{vU}, v{vT1}, 6, v{vU}
    v_lshl_add_u32 v{vU}, v{vT0}, 4, v{vU}
    s_lshl_b32 {TMP2}, {JF}, 13
    s_lshl_b32 {TMP}, {W}, 8
    s_add_u32 {TMP2}, {TMP2}, {TMP}
    s_add_u32 {TMP2}, {TMP2}, {WS_DP}
    s_waitcnt lgkmcnt(0)
    """)
    for t in range(4):
        g(f"v_mfma_f32_16x16x32_bf16 {r4(vD2)}, {r4(vWD+4*t)}, {r4(vA+4*t)}, {'0' if t == 0 else r4(vD2)}")
    g(f"""
    s_nop 7
    buffer_store_dwordx4 {r4(vD2)}, v{vU}, {sWS}, {TMP2} offen sc1
    """)
    g.stamp(9)
    g("s_branch L_fin")
    g.label("L_final")
    srd(32, 66, 4096)
    g(f"""
    s_lshl_b32 {JF}, {X}, 3
    s_add_u32 {JF}, {JF}, {W}
    v_lshrrev_b32 v{vU}, 3, v{vL}
    v_lshlrev_b32 v{vU}, 13, v{vU}
    v_and_b32 v{vU+1}, 7, v{vL}
    v_lshl_add_u32 v{vU}, v{vU+1}, 4, v{vU}
    s_lshl_b32 {TMP}, {JF}, 7
    s_add_u32 {TMP2}, {TMP}, {WS_AP}
    """)
    g(f"""
    v_lshrrev_b32 v{vU+2}, 5, v{vL}
    v_bfe_u32 v{vU+3}, v{vL}, 4, 1
    v_lshl_add_u32 v{vU+2}, v{vU+3}, 1, v{vU+2}
    v_lshl_add_u32 v{vU+2}, v{vU+1}, 2, v{vU+2}
    v_lshlrev_b32 v{vU+2}, 1, v{vU+2}
    s_lshl_b32 {TMP3}, {JF}, 6
    buffer_load_ushort v{vU+4}, v{vU+2}, {sXS}, {TMP3} offen
    s_mov_b32 {CNT}, 0
    """)
    g.label("L_hpoll")
    g(f"buffer_load_dwordx4 {r4(vP+28)}, v{vU}, {sWS}, {TMP2} offen sc1")
    g("s_waitcnt vmcnt(0)")
    sentinel_check(vP+28, 4, vU+11)
    pollcheck("L_hok", "L_hpoll")
    g.label("L_hok")
    g.stamp(7)
    g(f"""
    v_lshlrev_b32 v{vU+4}, 16, v{vU+4}
    s_add_u32 {TMP2}, {TMP}, {WS_DP}
    s_mov_b32 {CNT}, 0
    """)
    g.label("L_dpoll")
    for i in range(7):
        if i: g(f"s_add_u32 {TMP}, {TMP2}, {65536*i}")
        g(f"buffer_load_dwordx4 {r4(vP+4*i)}, v{vU}, {sWS}, {TMP if i else TMP2} offen sc1")
    g("s_waitcnt vmcnt(0)")
    sentinel_check(vP, 28, vU+11)
    pollcheck("L_dok", "L_dpoll")
    g.label("L_dok")
    g.stamp(8)
    for st in (4, 8, 16):
        for i in range(0, 32, 2*st):
            g(f"v_pk_add_f32 {r2(vP+i)}, {r2(vP+i)}, {r2(vP+i+st)}")
            g(f"v_pk_add_f32 {r2(vP+i+2)}, {r2(vP+i+2)}, {r2(vP+i+st+2)}")
    g(f"""
    s_nop 1
    v_permlane32_swap_b32 v{vP}, v{vP+1}
    v_permlane32_swap_b32 v{vP+2}, v{vP+3}
    s_nop 1
    v_add_f32 v{vP}, v{vP}, v{vP+1}
    v_add_f32 v{vP+2}, v{vP+2}, v{vP+3}
    s_nop 1
    v_permlane16_swap_b32 v{vP}, v{vP+2}
    s_nop 1
    v_add_f32 v{vP}, v{vP}, v{vP+2}
    s_nop 1
    v_add_f32_dpp v{vP}, v{vP}, v{vP} row_ror:8 {DPPF}
    v_add_f32 v{vP}, v{vP}, v{vU+4}
    v_cvt_pk_bf16_f32 v{vP}, v{vP}, v{vP}
    s_mov_b32 exec_lo, 0x00ff00ff
    s_mov_b32 exec_hi, 0x00ff00ff
    buffer_store_short v{vP}, v{vU+2}, {sOUT}, {TMP3} offen
    s_mov_b64 exec, 1
    s_cmp_lg_u32 {JF}, 0
    s_cselect_b32 {TMP2}, 0x40000000, {WS_EPOCH}
    v_mov_b32 v{vP+1}, {T}
    v_mov_b32 v{vP+2}, 0
    buffer_store_dword v{vP+1}, v{vP+2}, {sWS}, {TMP2} offen
    s_mov_b64 exec, -1
    """)
    g.stamp(9)
    g("s_branch L_fin")

    NVGPR = 248
    hdr = open("sequential_preLN__gqa_block_cached__swiglu_ffn__decode.s.ref").read().split("; Override launch")[0]
    return hdr + f"""; @launch grid=(256,1,1) block=(512,1,1) lds={LDS_BYTES}
.amdgcn_target "amdgcn-amd-amdhsa--gfx950"
.text
.globl {KN}
.p2align 8
.type {KN},@function
{KN}:
""" + g.text() + f"""
.section .rodata,"a"
.p2align 6
.amdhsa_kernel {KN}
  .amdhsa_next_free_vgpr {NVGPR}
  .amdhsa_next_free_sgpr 102
  .amdhsa_accum_offset {NVGPR}
  .amdhsa_group_segment_fixed_size 0
  .amdhsa_kernarg_size 96
  .amdhsa_user_sgpr_count 2
  .amdhsa_user_sgpr_kernarg_segment_ptr 1
  .amdhsa_system_sgpr_workgroup_id_x 1
.end_amdhsa_kernel
"""

if __name__ == "__main__":
    open("v2.s", "w").write(build(False))
    open("v2s.s", "w").write(build(True))
    open("v2d.s", "w").write(build(True, dbg=True))
    print("LDS", LDS_BYTES)
```

```python
import sys, math, struct
KN = "sequential_preLN__gqa_block_cached__swiglu_ffn__decode_kernel"
def f2u(x): return struct.unpack("<I", struct.pack("<f", x))[0]

class G:
    def __init__(self, stamps=False):
        self.L = []; self.stamps = stamps
    def __call__(self, s):
        for ln in s.strip("\n").split("\n"):
            if ln.strip(): self.L.append("    " + ln.strip())
    def label(self, n): self.L.append(n + ":")
    def stamp(self, i):
        if self.stamps: self(f"s_memrealtime s[{72+2*i}:{73+2*i}]")
    def text(self): return "\n".join(self.L) + "\n"

WS_EPOCH = 0x0
WS_READY = 0x1000
WS_QG    = 0x10000
WS_ST    = 0x20000
WS_OP    = 0x40000
WS_AP    = 0x80000
WS_DP    = 0x100000
WS_STAMP = 0xF000000
L_ST  = 0
L_OB  = 256
L_WT  = 0
L_HT  = 1024
L_ACT = L_HT + 8*768
L_R   = L_ACT + 512
L_W   = L_R + 20480
L_END = L_W + 8*16384
LDS_BYTES = (L_END + 255)//256*256
assert LDS_BYTES <= 160*1024

sK="s[8:11]"; sV="s[12:15]"; sWS="s[16:19]"; sWA="s[20:23]"; sWB="s[24:27]"; sXS="s[28:31]"; sOUT="s[32:35]"
W="s36"; X="s37"; R="s38"; T="s39"; KVOFF="s40"; TMP="s41"; TMP2="s42"; CNT="s43"; SLOT="s44"; B_="s45"; TMP3="s46"; OPT="s47"
NS=R; LW="s40"; JF="s44"; DONE="s45"
POLLMAX = 200000
NU = 22
def r4(b): return f"v[{b}:{b+3}]"
def r2(b): return f"v[{b}:{b+1}]"
DPPF = "row_mask:0xf bank_mask:0xf"

def build(stamps=False, pol="nt", wpol="nt", nv1=10, dbg=False):
    g = G(stamps)
    vL=1; vT0=2; vT1=3; vT2=4; vT3=5
    def pollcheck(lab_ok, lab_again):
        g(f"""
        s_add_u32 {CNT}, {CNT}, 1
        s_cmp_gt_u32 {CNT}, {POLLMAX}
        s_cbranch_scc1 {lab_ok}
        s_cbranch_vccnz {lab_again}
        """)
    def sentinel_check(base, n, tmp, dst="vcc"):
        g(f"v_max3_u32 v{tmp}, v{base}, v{base+1}, v{base+2}")
        i = 3
        while i + 1 < n:
            g(f"v_max3_u32 v{tmp}, v{tmp}, v{base+i}, v{base+i+1}"); i += 2
        if i < n: g(f"v_max_u32 v{tmp}, v{tmp}, v{base+i}")
        g(f"v_cmp_eq_u32 {dst}, -1, v{tmp}")
    def srd(d, lo, size):
        g(f"s_mov_b32 s{d}, s{lo}\ns_mov_b32 s{d+1}, s{lo+1}\ns_mov_b32 s{d+2}, {size:#x}\ns_mov_b32 s{d+3}, 0x20000")

    if stamps:
        for i in range(1, 14): g(f"s_mov_b64 s[{72+2*i}:{73+2*i}], 0")
    g.stamp(0)
    g(f"""
    s_cmp_ge_u32 s2, 256
    s_cbranch_scc1 L_end
    s_load_dwordx16 s[48:63], s[0:1], 0
    s_load_dwordx8 s[64:71], s[0:1], 64
    v_lshrrev_b32 v{vT0}, 6, v0
    v_and_b32 v{vL}, 63, v0
    s_and_b32 {X}, s2, 7
    v_readfirstlane_b32 {W}, v{vT0}
    s_lshr_b32 {R}, s2, 3
    v_lshrrev_b32 v{vT0}, 4, v{vL}
    v_bfe_u32 v{vT1}, v{vL}, 2, 2
    v_and_b32 v{vT2}, 3, v{vL}
    v_and_b32 v{vT3}, 15, v{vL}
    s_mov_b32 s18, 0x10000000
    s_mov_b32 s19, 0x20000
    s_cmp_lt_u32 {R}, 8
    s_cbranch_scc1 L_service
    """)
    vKO=6; vVO=7; vQO=8; vC=9; vM=10; vLS=11; vF=12
    vSEL=13
    vQ=18
    vO=22
    vS=30
    vQR=30
    vD=52
    vKK=68
    vVV=158
    NV_ATT = 246
    g(f"""
    s_sub_u32 {R}, {R}, 8
    s_mul_i32 {B_}, {R}, 43
    s_lshr_b32 {B_}, {B_}, 8
    s_mul_i32 {TMP}, {B_}, 6
    s_sub_u32 {TMP}, {R}, {TMP}
    s_mul_i32 {TMP2}, {W}, 6
    s_add_u32 {TMP}, {TMP}, {TMP2}
    s_min_u32 {TMP2}, {TMP}, 16
    s_mul_i32 {KVOFF}, {TMP}, 21
    s_add_u32 {KVOFF}, {KVOFF}, {TMP2}
    s_lshl_b32 {TMP2}, {B_}, 3
    s_or_b32 {TMP2}, {TMP2}, {X}
    s_lshl_b32 {TMP2}, {TMP2}, 10
    s_add_u32 {KVOFF}, {KVOFF}, {TMP2}
    s_lshl_b32 {KVOFF}, {KVOFF}, 10
    s_add_u32 {OPT}, {KVOFF}, {21*1024}
    s_cmp_lt_u32 {TMP}, 16
    s_cselect_b32 {OPT}, {OPT}, 0x40000000
    s_cselect_b32 s3, 0, 0xff800000
    s_mul_i32 {SLOT}, {X}, 24
    s_add_u32 {SLOT}, {SLOT}, {R}
    v_lshlrev_b32 v{vVO}, 4, v{vL}
    v_lshlrev_b32 v{vKO}, 6, v{vT0}
    v_lshl_add_u32 v{vKO}, v{vT1}, 8, v{vKO}
    v_lshl_add_u32 v{vKO}, v{vT2}, 4, v{vKO}
    s_mov_b32 s10, 0x2000000
    s_mov_b32 s11, 0x20000
    s_mov_b32 s14, 0x2000000
    s_mov_b32 s15, 0x20000
    s_waitcnt lgkmcnt(0)
    s_mov_b32 s8, s50
    s_mov_b32 s9, s51
    s_mov_b32 s12, s52
    s_mov_b32 s13, s53
    s_mov_b32 s16, s70
    s_mov_b32 s17, s71
    s_load_dword {T}, s[70:71], {WS_EPOCH}
    """)
    def kv_load(n, base, voff, sr, sreg):
        if n == 0:
            g(f"buffer_load_dwordx4 {r4(base)}, v{voff}, {sr}, {OPT} offen {pol}")
        else:
            m = n - 1
            if m % 4 == 0: g(f"s_add_u32 {sreg}, {KVOFF}, {m*1024}")
            g(f"buffer_load_dwordx4 {r4(base+4*n)}, v{voff}, {sr}, {sreg} offen offset:{(m%4)*1024} {pol}")
    for n in range(NU): kv_load(n, vKK+2, vKO, sK, TMP)
    g.stamp(1)
    g(f"""
    v_lshlrev_b32 v{vQO}, 7, v{vT0}
    v_lshl_add_u32 v{vQO}, v{vT1}, 9, v{vQO}
    v_lshl_add_u32 v{vQO}, v{vT2}, 5, v{vQO}
    s_lshl_b32 {TMP2}, {B_}, 14
    s_lshl_b32 {TMP3}, {X}, 11
    s_add_u32 {TMP2}, {TMP2}, {TMP3}
    s_add_u32 {TMP2}, {TMP2}, {WS_QG}
    """)
    def q_loads():
        g(f"buffer_load_dwordx4 {r4(vQR)}, v{vQO}, {sWS}, {TMP2} offen sc1")
        g(f"buffer_load_dwordx4 {r4(vQR+4)}, v{vQO}, {sWS}, {TMP2} offen offset:16 sc1")
    def q_check():
        g(f"""
        v_xor_b32 v{vD}, {T}, v{vQR+1}
        v_xor_b32 v{vD+1}, {T}, v{vQR+3}
        v_xor_b32 v{vD+2}, {T}, v{vQR+5}
        v_xor_b32 v{vD+3}, {T}, v{vQR+7}
        v_or_b32 v{vD}, v{vD}, v{vD+1}
        v_or3_b32 v{vD}, v{vD}, v{vD+2}, v{vD+3}
        v_cmp_ne_u32 vcc, 0, v{vD}
        v_mov_b32 v{vQ}, v{vQR}
        v_mov_b32 v{vQ+1}, v{vQR+2}
        v_mov_b32 v{vQ+2}, v{vQR+4}
        v_mov_b32 v{vQ+3}, v{vQR+6}
        """)
    q_loads()
    for n in range(nv1): kv_load(n, vVV, vVO, sV, TMP)
    cscale = (128 ** -0.5) * math.log2(math.e)
    g(f"""
    v_mov_b32 v{vC}, {f2u(cscale):#x}
    v_mov_b32 v{vD}, 0x0c0c0c0c
    v_mov_b32 v{vD+1}, 0x0c0c0100
    v_mov_b32 v{vD+2}, 0x01000c0c
    v_mov_b32 v{vD+3}, 0x0c0c0302
    v_mov_b32 v{vD+4}, 0x03020c0c
    v_cmp_eq_u32 s[4:5], 0, v{vT2}
    v_cmp_eq_u32 s[6:7], 1, v{vT2}
    s_nop 1
    v_cndmask_b32 v{vSEL}, v{vD}, v{vD+1}, s[4:5]
    v_cndmask_b32 v{vSEL}, v{vSEL}, v{vD+2}, s[6:7]
    v_cndmask_b32 v{vSEL+1}, v{vD}, v{vD+3}, s[4:5]
    v_cndmask_b32 v{vSEL+1}, v{vSEL+1}, v{vD+4}, s[6:7]
    v_cmp_eq_u32 s[4:5], 2, v{vT2}
    v_cmp_eq_u32 s[6:7], 3, v{vT2}
    s_nop 1
    v_cndmask_b32 v{vSEL+2}, v{vD}, v{vD+1}, s[4:5]
    v_cndmask_b32 v{vSEL+2}, v{vSEL+2}, v{vD+2}, s[6:7]
    v_cndmask_b32 v{vSEL+3}, v{vD}, v{vD+3}, s[4:5]
    v_cndmask_b32 v{vSEL+3}, v{vSEL+3}, v{vD+4}, s[6:7]
    s_waitcnt lgkmcnt(0)
    s_add_u32 {T}, {T}, 1
    s_mov_b32 {CNT}, 0
    s_waitcnt vmcnt({nv1})
    """)
    q_check()
    g("s_cbranch_vccz L_qk_inter")
    for n in range(nv1, NU): kv_load(n, vVV, vVO, sV, TMP)
    g.stamp(2)
    g.label("L_qpoll")
    q_loads()
    g("s_waitcnt vmcnt(0)")
    q_check()
    pollcheck("L_qok", "L_qpoll")
    g.label("L_qok")
    g.stamp(3)
    def qk_mfma(n):
        d = vD + 4*(n % 4)
        g(f"v_mfma_f32_16x16x32_bf16 {r4(d)}, {r4(vKK+2+4*n)}, {r4(vQ)}, 0")
    def qk_red(n):
        d = vD + 4*(n % 4)
        g(f"v_mul_f32_dpp v{vS+n}, v{d}, v{vC} quad_perm:[0,0,0,0] {DPPF}")
        for b in range(1, 4):
            g(f"v_fmac_f32_dpp v{vS+n}, v{d+b}, v{vC} quad_perm:[{b},{b},{b},{b}] {DPPF}")
    def qk(inter):
        g("s_nop 1")
        qk_mfma(0); qk_mfma(1); qk_mfma(2)
        g("s_nop 5")
        nv = nv1
        for n in range(NU):
            if n + 3 < NU: qk_mfma(n+3)
            else: g("s_nop 0")
            qk_red(n)
            if inter and nv < NU and (n % 2 == 0 or NU - nv >= NU - n):
                kv_load(nv, vVV, vVO, sV, TMP); nv += 1
        while inter and nv < NU:
            kv_load(nv, vVV, vVO, sV, TMP); nv += 1
    qk(False)
    g("s_branch L_soft")
    g.label("L_qk_inter")
    g.stamp(3)
    qk(True)
    g.stamp(2)
    g.label("L_soft")
    g(f"v_add_f32 v{vS}, s3, v{vS}")
    g(f"v_max3_f32 v{vM}, v{vS+1}, v{vS+2}, v{vS+3}")
    for n in range(4, NU, 2):
        g(f"v_max3_f32 v{vM}, v{vM}, v{vS+n}, v{vS+n+1}")
    g(f"v_max_f32 v{vM}, v{vM}, v{vS}")
    def allred_rows(v, op, tmp):
        g(f"""
        v_mov_b32 v{tmp}, v{v}
        s_nop 1
        v_permlane16_swap_b32 v{v}, v{tmp}
        s_nop 1
        {op} v{v}, v{v}, v{tmp}
        v_mov_b32 v{tmp}, v{v}
        s_nop 1
        v_permlane32_swap_b32 v{v}, v{tmp}
        s_nop 1
        {op} v{v}, v{v}, v{tmp}
        """)
    allred_rows(vM, "v_max_f32", vD)
    for n in range(NU):
        g(f"v_sub_f32 v{vS+n}, v{vS+n}, v{vM}")
    for n in range(NU):
        g(f"v_exp_f32 v{vS+n}, v{vS+n}")
        g(f"v_mov_b64 {r2(vKK+4*n)}, 0")
    g(f"v_mov_b64 {r2(vKK+4*NU)}, 0")
    g(f"v_pk_add_f32 {r2(vD+12)}, {r2(vS)}, {r2(vS+2)}")
    for n in range(4, NU, 2):
        g(f"v_pk_add_f32 {r2(vD+12)}, {r2(vD+12)}, {r2(vS+n)}")
    g(f"v_add_f32 v{vLS}, v{vD+12}, v{vD+13}")
    allred_rows(vLS, "v_add_f32", vD+12)
    g(f"""
    s_lshl_b32 {TMP}, {W}, 2
    s_add_u32 {TMP}, {TMP}, {L_ST}
    v_lshl_add_u32 v{vD+12}, v{vT1}, 5, {TMP}
    s_mov_b64 exec, 0x1111
    ds_write_b32 v{vD+12}, v{vM}
    ds_write_b32 v{vD+12}, v{vLS} offset:128
    s_mov_b64 exec, -1
    """)
    for n in range(0, NU, 2):
        g(f"v_cvt_pk_bf16_f32 v{vD+n//2}, v{vS+n}, v{vS+n+1}")
    g(f"""
    s_waitcnt lgkmcnt(0)
    s_cmp_lt_u32 {W}, 4
    s_cbranch_scc1 L_nob2
    s_barrier
    """)
    g.label("L_nob2")
    for n in range(NU):
        w = vD + n//2
        g(f"v_perm_b32 v{vKK+4*n+2}, v{w}, v{w}, v{vSEL + (n&1)}")
        g(f"v_perm_b32 v{vKK+4*n+3}, v{w}, v{w}, v{vSEL + 2 + (n&1)}")
    for i in range(0, 8, 2):
        g(f"v_mov_b64 {r2(vO+i)}, 0")
    g.stamp(4)
    def fcalc():
        g(f"""
        v_lshlrev_b32 v{vD+12}, 5, v{vT0}
        v_add_u32 v{vD+13}, {TMP}, v{vD+12}
        ds_read_b128 {r4(vD)}, v{vD+12} offset:{L_ST}
        ds_read_b128 {r4(vD+4)}, v{vD+12} offset:{L_ST+16}
        ds_read_b32 v{vF}, v{vD+13}
        s_waitcnt lgkmcnt(0)
        v_max3_f32 v{vM}, v{vD}, v{vD+1}, v{vD+2}
        v_max3_f32 v{vM}, v{vM}, v{vD+3}, v{vD+4}
        v_max3_f32 v{vM}, v{vM}, v{vD+5}, v{vD+6}
        v_max_f32 v{vM}, v{vM}, v{vD+7}
        v_sub_f32 v{vF}, v{vF}, v{vM}
        v_exp_f32 v{vF}, v{vF}
        """)
    g(f"""
    s_mul_i32 {TMP2}, {W}, 2304
    s_add_u32 {TMP2}, {TMP2}, {L_OB}
    v_add_u32 v{vQO}, {TMP2}, v{vVO}
    s_cmp_lt_u32 {W}, 4
    s_cbranch_scc1 L_pv
    """)
    fcalc()
    g.label("L_pv")
    for n in range(NU):
        g(f"s_waitcnt vmcnt({NU-1-n})")
        g(f"v_mfma_f32_16x16x32_bf16 {r4(vO)}, {r4(vKK+4*n+2)}, {r4(vVV+4*n)}, {r4(vO)}")
        g(f"v_mfma_f32_16x16x32_bf16 {r4(vO+4)}, {r4(vKK+4*n)}, {r4(vVV+4*n)}, {r4(vO+4)}")
    g.stamp(5)
    g(f"""
    s_cmp_ge_u32 {W}, 4
    s_cbranch_scc1 L_owrite
    """)
    g(f"""
    v_lshrrev_b32 v{vKO}, 2, v0
    v_lshlrev_b32 v{vKO}, 4, v{vKO}
    v_and_b32 v{vD+2}, 1, v0
    v_lshl_add_u32 v{vKO}, v{vD+2}, 3, v{vKO}
    v_bfe_u32 v{vD+2}, v0, 1, 1
    v_mul_u32_u24 v{vD+2}, 1152, v{vD+2}
    v_add_u32 v{vKO}, v{vKO}, v{vD+2}
    v_lshlrev_b32 v{vC}, 2, v0
    s_lshl_b32 {TMP3}, {SLOT}, 10
    s_add_u32 {TMP3}, {TMP3}, {WS_OP}
    s_barrier
    """)
    fcalc()
    g(f"""
    s_cmp_lg_u32 {W}, 0
    s_cbranch_scc1 L_owrite
    ds_read_b128 {r4(vS)}, v{vD+12} offset:{L_ST+128}
    ds_read_b128 {r4(vS+4)}, v{vD+12} offset:{L_ST+144}
    """)
    for i in range(8): g(f"v_sub_f32 v{vD+i}, v{vD+i}, v{vM}")
    for i in range(8): g(f"v_exp_f32 v{vD+i}, v{vD+i}")
    g(f"s_waitcnt lgkmcnt(0)")
    g(f"v_mul_f32 v{vLS}, v{vD}, v{vS}")
    for i in range(1, 8): g(f"v_fmac_f32 v{vLS}, v{vD+i}, v{vS+i}")
    g(f"""
    v_lshlrev_b32 v{vD+8}, 3, v{vT0}
    s_lshl_b32 {TMP2}, {SLOT}, 7
    s_add_u32 {TMP2}, {TMP2}, {WS_ST}
    s_mov_b32 exec_lo, 0x00010001
    s_mov_b32 exec_hi, 0x00010001
    buffer_store_dwordx2 {r2(vM)}, v{vD+8}, {sWS}, {TMP2} offen sc1
    s_mov_b64 exec, -1
    """)
    g.stamp(8)
    g.label("L_owrite")
    g("s_nop 4")
    for i in range(8): g(f"v_mul_f32 v{vO+i}, v{vO+i}, v{vF}")
    g(f"""
    ds_write_b128 v{vQO}, {r4(vO)}
    ds_write_b128 v{vQO}, {r4(vO+4)} offset:1152
    s_waitcnt lgkmcnt(0)
    s_barrier
    """)
    g.stamp(6)
    g(f"""
    s_cmp_ge_u32 {W}, 4
    s_cbranch_scc1 L_fin
    """)
    for w in range(8):
        g(f"ds_read_b64 {r2(vS+2*w)}, v{vKO} offset:{L_OB+2304*w}")
    g(f"""
    s_waitcnt lgkmcnt(6)
    v_pk_add_f32 {r2(vS)}, {r2(vS)}, {r2(vS+2)}
    s_waitcnt lgkmcnt(4)
    v_pk_add_f32 {r2(vS+4)}, {r2(vS+4)}, {r2(vS+6)}
    s_waitcnt lgkmcnt(2)
    v_pk_add_f32 {r2(vS+8)}, {r2(vS+8)}, {r2(vS+10)}
    v_pk_add_f32 {r2(vS)}, {r2(vS)}, {r2(vS+4)}
    s_waitcnt lgkmcnt(0)
    v_pk_add_f32 {r2(vS+12)}, {r2(vS+12)}, {r2(vS+14)}
    v_pk_add_f32 {r2(vS)}, {r2(vS)}, {r2(vS+8)}
    v_pk_add_f32 {r2(vS)}, {r2(vS)}, {r2(vS+12)}
    v_cvt_pk_bf16_f32 v{vS}, v{vS}, v{vS+1}
    buffer_store_dword v{vS}, v{vC}, {sWS}, {TMP3} offen sc1
    """ if not stamps else f"""
    s_waitcnt lgkmcnt(0)
    v_pk_add_f32 {r2(vS)}, {r2(vS)}, {r2(vS+2)}
    v_pk_add_f32 {r2(vS+4)}, {r2(vS+4)}, {r2(vS+6)}
    v_pk_add_f32 {r2(vS+8)}, {r2(vS+8)}, {r2(vS+10)}
    v_pk_add_f32 {r2(vS)}, {r2(vS)}, {r2(vS+4)}
    v_pk_add_f32 {r2(vS+12)}, {r2(vS+12)}, {r2(vS+14)}
    v_pk_add_f32 {r2(vS)}, {r2(vS)}, {r2(vS+8)}
    v_pk_add_f32 {r2(vS)}, {r2(vS)}, {r2(vS+12)}
    v_cvt_pk_bf16_f32 v{vS}, v{vS}, v{vS+1}
    buffer_store_dword v{vS}, v{vC}, {sWS}, {TMP3} offen sc1
    """)
    g.stamp(7)
    g.label("L_fin")
    if dbg:
        g.stamp(13)
        srd(20, 68, 256)
        g(f"""
        s_waitcnt lgkmcnt(0)
        s_lshr_b32 {TMP}, s2, 3
        s_cmp_lg_u32 {TMP}, 7
        s_cbranch_scc1 L_end
        s_mov_b64 exec, 1
        v_mov_b32 v99, 0
        v_mov_b32 v102, s98
        buffer_atomic_umax v102, v99, {sWA}, 0 offen offset:32
        s_cmp_lg_u32 {W}, 0
        s_cbranch_scc1 L_end
        v_mov_b32 v101, s72
        s_lshl_b32 {TMP}, {X}, 2
        buffer_store_dword v101, v99, {sWA}, {TMP} offen
        """)
        for k, st in enumerate((2, 4, 5, 6, 7, 8)):
            g(f"v_mov_b32 v{103+k}, s{72+2*st}\nbuffer_atomic_umax v{103+k}, v99, {sWA}, 0 offen offset:{36+4*k}")
    elif stamps:
        g.stamp(13)
        g(f"""
        s_waitcnt lgkmcnt(0)
        s_lshl_b32 {TMP2}, s2, 3
        s_add_u32 {TMP2}, {TMP2}, {W}
        s_lshl_b32 {TMP2}, {TMP2}, 7
        s_add_u32 {TMP2}, {TMP2}, {WS_STAMP}
        s_mov_b64 exec, -1
        """)
        for i in range(28): g(f"v_mov_b32 v{100+i}, s{72+i}")
        g(f"v_mov_b32 v99, 0\ns_mov_b64 exec, 1")
        for i in range(7): g(f"buffer_store_dwordx4 {r4(100+4*i)}, v99, {sWS}, {TMP2} offen offset:{16*i}")
    g.label("L_end")
    g("s_endpgm")

    vA128=6
    vTR=7
    vTR64=11
    vU=12
    vWT=28
    vA=36
    vD2=52
    vWO=88
    vGU=120
    vWD=152
    vP=168
    vXF=216
    vCS=224
    g.label("L_service")
    g(f"""
    v_lshrrev_b32 v{vU}, 3, v{vL}
    v_and_b32 v{vU+1}, 7, v{vL}
    v_and_b32 v{vU+2}, 2, v{vU}
    v_xor_b32 v{vU+1}, v{vU+1}, v{vU+2}
    v_xor_b32 v{vU+2}, 4, v{vU+1}
    v_lshlrev_b32 v{vU+1}, 4, v{vU+1}
    v_lshlrev_b32 v{vU+2}, 4, v{vU+2}
    v_lshl_add_u32 v{vU+3}, v{vU}, 13, v{vU+1}
    v_lshl_add_u32 v{vU+4}, v{vU}, 13, v{vU+2}
    v_lshl_add_u32 v{vU+5}, v{vU}, 10, v{vU+1}
    v_lshl_add_u32 v{vU+6}, v{vU}, 10, v{vU+2}
    s_lshl_b32 {LW}, {W}, 14
    s_add_u32 {LW}, {LW}, {L_W}
    s_lshl_b32 {TMP2}, {X}, 10
    s_lshl_b32 {TMP3}, {NS}, 7
    s_add_u32 {TMP2}, {TMP2}, {TMP3}
    s_lshl_b32 {TMP3}, {W}, 19
    s_add_u32 {TMP2}, {TMP2}, {TMP3}
    s_mov_b32 {TMP3}, {LW}
    s_waitcnt lgkmcnt(0)
    s_mov_b32 s16, s70
    s_mov_b32 s17, s71
    s_load_dword {T}, s[70:71], {WS_EPOCH}
    """)
    srd(20, 54, 0x400000)
    srd(28, 48, 4096)
    vOFFQ = (vU+3, vU+4); vOFF1K = (vU+5, vU+6)
    for i in range(8): g(f"v_mov_b32 v{vA+i}, 0x3f803f80")
    g(f"""
    v_lshlrev_b32 v{vU+7}, 10, v{vT2}
    v_lshl_add_u32 v{vU+7}, v{vT0}, 4, v{vU+7}
    s_lshl_b32 {TMP}, {W}, 7
    s_mov_b32 exec_lo, 0x000f000f
    s_mov_b32 exec_hi, 0x000f000f
    buffer_load_dwordx4 {r4(vA)}, v{vU+7}, {sXS}, {TMP} offen
    buffer_load_dwordx4 {r4(vA+4)}, v{vU+7}, {sXS}, {TMP} offen offset:64
    s_mov_b64 exec, -1
    """)
    for i in range(8):
        g(f"""
        s_mov_b32 m0, {TMP3}
        s_add_u32 {TMP3}, {TMP3}, 1024
        buffer_load_dwordx4 v{vOFFQ[i&1]}, {sWA}, {TMP2} offen {wpol} lds
        s_add_u32 {TMP2}, {TMP2}, {8*8192}
        """)
    g("s_barrier")
    g(f"""
    v_mov_b32 v{vP}, -1
    v_mov_b32 v{vP+1}, -1
    v_mov_b32 v{vP+2}, -1
    v_mov_b32 v{vP+3}, -1
    v_lshlrev_b32 v{vU+8}, 4, v{vL}
    s_mul_i32 {JF}, {X}, 7
    s_add_u32 {JF}, {JF}, {NS}
    s_lshl_b32 {TMP2}, {JF}, 13
    s_lshl_b32 {TMP}, {W}, 10
    s_add_u32 {TMP2}, {TMP2}, {TMP}
    s_add_u32 {TMP2}, {TMP2}, {WS_DP}
    s_cmp_eq_u32 {NS}, 7
    s_cselect_b32 {TMP2}, 0x40000000, {TMP2}
    buffer_store_dwordx4 {r4(vP)}, v{vU+8}, {sWS}, {TMP2} offen sc1
    s_lshl_b32 {TMP}, {X}, 3
    s_add_u32 {TMP}, {TMP}, {NS}
    s_mul_i32 {TMP}, {TMP}, 3
    s_add_u32 {TMP2}, {TMP}, {W}
    s_lshl_b32 {TMP2}, {TMP2}, 10
    s_add_u32 {TMP2}, {TMP2}, {WS_OP}
    s_cmp_lt_u32 {W}, 3
    s_cbranch_scc1 L_clr_go
    s_lshl_b32 {TMP2}, {TMP}, 7
    s_add_u32 {TMP2}, {TMP2}, {WS_ST}
    s_mov_b64 exec, 0xffffff
    s_cmp_eq_u32 {W}, 3
    s_cbranch_scc1 L_clr_go
    s_sub_u32 {TMP2}, {W}, 4
    s_lshl_b32 {TMP2}, {TMP2}, 11
    s_lshl_b32 {TMP}, {X}, 13
    s_add_u32 {TMP2}, {TMP2}, {TMP}
    s_lshl_b32 {TMP}, {NS}, 8
    s_add_u32 {TMP2}, {TMP2}, {TMP}
    s_add_u32 {TMP2}, {TMP2}, {WS_AP}
    s_mov_b64 exec, 0xffff
    """)
    g.label("L_clr_go")
    g(f"""
    buffer_store_dwordx4 {r4(vP)}, v{vU+8}, {sWS}, {TMP2} offen sc1
    s_mov_b64 exec, -1
    """)
    srd(24, 56, 0x400000)
    g(f"""
    s_lshl_b32 {TMP2}, {X}, 19
    s_lshl_b32 {TMP}, {W}, 16
    s_add_u32 {TMP2}, {TMP2}, {TMP}
    s_lshl_b32 {TMP}, {NS}, 7
    s_add_u32 {TMP2}, {TMP2}, {TMP}
    """)
    def wo_dma(i):
        g(f"""
        s_mov_b32 m0, {TMP3}
        s_add_u32 {TMP3}, {TMP3}, 1024
        buffer_load_dwordx4 v{vOFF1K[i&1]}, {sWB}, {TMP2} offen {wpol} lds
        s_add_u32 {TMP2}, {TMP2}, {8*1024}
        """)
    for i in range(4): wo_dma(i)
    g(f"""
    v_lshrrev_b32 v{vU+9}, 1, v{vT1}
    v_and_b32 v{vU+10}, 1, v{vT0}
    v_lshl_or_b32 v{vU+9}, v{vU+10}, 1, v{vU+9}
    v_lshlrev_b32 v{vU+10}, 10, v{vT0}
    v_lshl_add_u32 v{vU+10}, v{vT1}, 7, v{vU+10}
    v_lshl_add_u32 v{vU+10}, v{vT2}, 3, v{vU+10}
    v_add_u32 v{vU+10}, {LW}, v{vU+10}
    """)
    for nt in range(4):
        g(f"v_xor_b32 v{vU+11}, {nt}, v{vU+9}")
        g(f"v_lshl_add_u32 v{vTR+nt}, v{vU+11}, 5, v{vU+10}")
    def tr128(dst, nt, off):
        g(f"ds_read_b64_tr_b16 {r2(dst)}, v{vTR+nt} offset:{off}")
        g(f"ds_read_b64_tr_b16 {r2(dst+2)}, v{vTR+nt} offset:{off+512}")
    g(f"""
    v_mul_u32_u24 v{vU+12}, 10240, v{vT0}
    v_lshl_add_u32 v{vU+12}, v{vT3}, 4, v{vU+12}
    s_lshl_b32 {TMP}, {W}, 8
    s_add_u32 {TMP}, {TMP}, {L_R}
    v_add_u32 v{vU+12}, {TMP}, v{vU+12}
    s_waitcnt vmcnt(6) lgkmcnt(0)
    s_add_u32 {T}, {T}, 1
    """)
    g.stamp(1)
    if stamps: g("s_waitcnt lgkmcnt(0)")
    vRW = vU+12
    for kt in range(2):
        for nt in range(4):
            tr128(vGU+16*kt+4*nt, nt, 4096*kt)
    g(f"v_mfma_f32_16x16x32_bf16 {r4(vD2+16)}, {r4(vA)}, {r4(vA)}, 0")
    g(f"v_mfma_f32_16x16x32_bf16 {r4(vD2+16)}, {r4(vA+4)}, {r4(vA+4)}, {r4(vD2+16)}")
    for kt in range(2):
        g(f"s_waitcnt lgkmcnt({8*(1-kt)})")
        for nt in range(4):
            g(f"v_mfma_f32_16x16x32_bf16 {r4(vD2+4*nt)}, {r4(vA+4*kt)}, {r4(vGU+16*kt+4*nt)}, {'0' if kt == 0 else r4(vD2+4*nt)}")
    for i in range(4, 8): wo_dma(i)
    g("s_mov_b32 exec_hi, 0")
    for t in (4, 0, 1, 2, 3):
        g(f"ds_write_b128 v{vRW}, {r4(vD2+4*t)} offset:{2048*t}")
    g(f"""
    s_mov_b32 exec_hi, -1
    s_waitcnt vmcnt(8) lgkmcnt(0)
    s_barrier
    s_cmp_ge_u32 {W}, 4
    s_cbranch_scc1 L_qdone
    """)
    def read8(dst, addr, unit0):
        for i in range(4):
            g(f"ds_read2st64_b32 {r2(dst+2*i)}, v{addr} offset0:{unit0+2*i} offset1:{unit0+2*i+1}")
    def sum8(bases):
        for b in bases:
            g(f"v_pk_add_f32 {r2(b)}, {r2(b)}, {r2(b+2)}")
            g(f"v_pk_add_f32 {r2(b+4)}, {r2(b+4)}, {r2(b+6)}")
        for b in bases: g(f"v_pk_add_f32 {r2(b)}, {r2(b)}, {r2(b+4)}")
        for b in bases: g(f"v_add_f32 v{b}, v{b}, v{b+1}")
    def ln_stats(S1, S2):
        g(f"""
        v_mul_f32 v{S1}, {f2u(1/512):#x}, v{S1}
        v_mul_f32 v{S2}, {f2u(1/512):#x}, v{S2}
        v_fma_f32 v{S2}, -v{S1}, v{S1}, v{S2}
        v_max_f32 v{S2}, 0, v{S2}
        v_add_f32 v{S2}, {f2u(1e-5):#x}, v{S2}
        v_rsq_f32 v{S2}, v{S2}
        """)
    g(f"""
    v_lshlrev_b32 v{vU}, 11, v{vT0}
    v_lshl_add_u32 v{vU}, v{vT3}, 4, v{vU}
    v_add_u32 v{vU}, {L_R}, v{vU}
    s_lshl_b32 {TMP}, {W}, 2
    v_add_u32 v{vU+1}, {TMP}, v{vU}
    s_mul_i32 {TMP2}, {W}, 20
    s_add_u32 {TMP2}, {TMP2}, {L_R+8192}
    v_mov_b32 v{vU+2}, {TMP2}
    s_add_u32 {TMP}, {TMP}, {L_R+8192+64}
    v_mov_b32 v{vU+7}, {TMP}
    """)
    read8(vP, vU+1, 0); read8(vP+8, vU, 40); read8(vP+16, vU+7, 0); read8(vP+24, vU+2, 0)
    g("s_waitcnt lgkmcnt(0)")
    sum8([vP, vP+8, vP+16, vP+24])
    ln_stats(vP+16, vP+24)
    g(f"""
    v_fma_f32 v{vP}, -v{vP+16}, v{vP+8}, v{vP}
    v_mul_f32 v{vP}, v{vP}, v{vP+24}
    s_lshl_b32 {TMP2}, {W}, 14
    s_lshl_b32 {TMP}, {X}, 11
    v_mov_b32_dpp v{vP+1}, v{vP} quad_perm:[1,1,3,3] {DPPF}
    s_add_u32 {TMP2}, {TMP2}, {TMP}
    s_lshl_b32 {TMP}, {NS}, 8
    s_add_u32 {TMP2}, {TMP2}, {TMP}
    s_add_u32 {TMP2}, {TMP2}, {WS_QG}
    v_cvt_pk_bf16_f32 v{vP}, v{vP}, v{vP+1}
    v_mov_b32 v{vP+1}, {T}
    v_lshlrev_b32 v{vU}, 2, v{vL}
    s_mov_b32 exec_lo, 0x55555555
    s_mov_b32 exec_hi, 0x55555555
    buffer_store_dwordx2 {r2(vP)}, v{vU}, {sWS}, {TMP2} offen sc1
    s_mov_b64 exec, 1
    s_lshl_b32 {TMP2}, {X}, 3
    s_add_u32 {TMP2}, {TMP2}, {NS}
    s_lshl_b32 {TMP2}, {TMP2}, 2
    s_add_u32 {TMP2}, {TMP2}, {WS_READY}
    s_cmp_lg_u32 {W}, 0
    s_cselect_b32 {TMP2}, 0x40000000, {TMP2}
    buffer_store_dword v{vP+1}, v{vU}, {sWS}, {TMP2} offen sc1
    s_mov_b64 exec, -1
    """)
    g.label("L_qdone")
    g.stamp(2)
    g(f"""
    s_cmp_eq_u32 {NS}, 7
    s_cbranch_scc1 L_nogu
    """)
    srd(20, 60, 512*3584)
    srd(24, 62, 512*3584)
    g(f"""
    v_lshrrev_b32 v{vU}, 2, v{vL}
    v_mul_u32_u24 v{vU}, 3584, v{vU}
    v_lshl_add_u32 v{vU}, v{vT2}, 4, v{vU}
    s_lshl_b32 {TMP2}, {JF}, 6
    s_mul_i32 {TMP}, {W}, {64*3584}
    s_add_u32 {TMP2}, {TMP2}, {TMP}
    s_mov_b32 {TMP3}, {LW}
    """)
    for i in range(4):
        g(f"""
        s_mov_b32 m0, {TMP3}
        s_add_u32 {TMP3}, {TMP3}, 4096
        buffer_load_dwordx4 v{vU}, {sWA}, {TMP2} offen {wpol} lds
        s_mov_b32 m0, {TMP3}
        s_sub_u32 {TMP3}, {TMP3}, {4096-1024}
        buffer_load_dwordx4 v{vU}, {sWB}, {TMP2} offen {wpol} lds
        s_add_u32 {TMP2}, {TMP2}, {16*3584}
        """)
    g("s_waitcnt vmcnt(8)")
    g("s_branch L_wo_rd")
    g.label("L_nogu")
    g("s_waitcnt vmcnt(0)")
    g.label("L_wo_rd")
    for kt in range(2):
        for nt in range(4):
            tr128(vWO+16*kt+4*nt, nt, 8192+4096*kt)
    g(f"""
    s_waitcnt lgkmcnt(0)
    s_cmp_eq_u32 {NS}, 7
    s_cbranch_scc1 L_wdone
    """)
    srd(20, 64, 1792*1024)
    g(f"""
    s_lshl_b32 {TMP2}, {JF}, 15
    s_lshl_b32 {TMP}, {W}, 7
    s_add_u32 {TMP2}, {TMP2}, {TMP}
    s_add_u32 {TMP3}, {LW}, 8192
    """)
    for i in range(4):
        g(f"""
        s_mov_b32 m0, {TMP3}
        s_add_u32 {TMP3}, {TMP3}, 1024
        buffer_load_dwordx4 v{vOFF1K[i&1]}, {sWA}, {TMP2} offen {wpol} lds
        s_add_u32 {TMP2}, {TMP2}, {8*1024}
        """)
    g(f"""
    v_lshlrev_b32 v{vU}, 10, v{vT0}
    v_lshl_add_u32 v{vU}, v{vT3}, 3, v{vU}
    s_lshl_b32 {TMP2}, {W}, 7
    buffer_load_dwordx2 {r2(vXF)}, v{vU}, {sXS}, {TMP2} offen
    v_lshlrev_b32 v{vTR64}, 9, v{vT0}
    v_lshl_add_u32 v{vTR64}, v{vT1}, 6, v{vTR64}
    v_lshl_add_u32 v{vTR64}, v{vT2}, 3, v{vTR64}
    v_add_u32 v{vTR64}, {LW}, v{vTR64}
    s_waitcnt vmcnt(5)
    """)
    for kt in range(2):
        for nt in range(4):
            off = 4096*(nt >> 1) + 2048*kt + 32*(nt & 1)
            g(f"ds_read_b64_tr_b16 {r2(vGU+16*kt+4*nt)}, v{vTR64} offset:{off}")
            g(f"ds_read_b64_tr_b16 {r2(vGU+16*kt+4*nt+2)}, v{vTR64} offset:{off+256}")
    g("s_waitcnt vmcnt(0) lgkmcnt(0)")
    for nt in range(4): tr128(vWD+4*nt, nt, 8192)
    g(f"""
    v_lshlrev_b32 v{vXF+4}, 16, v{vXF}
    v_and_b32 v{vXF+5}, 0xffff0000, v{vXF}
    v_lshlrev_b32 v{vXF+6}, 16, v{vXF+1}
    v_and_b32 v{vXF+7}, 0xffff0000, v{vXF+1}
    """)
    g(f"""
    s_mul_i32 {TMP}, {W}, 768
    s_add_u32 {TMP}, {TMP}, {L_HT}
    v_mov_b32 v{vU}, 0x3f803f80
    v_mov_b32 v{vU+1}, 0x3f803f80
    v_lshl_add_u32 v{vU+2}, v{vT3}, 3, {TMP}
    ds_write_b64 v{vU+2}, {r2(vU)} offset:576
    v_mov_b32 v{vU}, 0
    v_lshlrev_b32 v{vU+2}, 2, v{vT3}
    ds_write_b32 v{vU+2}, v{vU} offset:{L_ACT+320}
    s_waitcnt lgkmcnt(0)
    """)
    g.label("L_wdone")
    g.stamp(3)
    g(f"""
    v_lshlrev_b32 v{vU}, 2, v{vL}
    s_mov_b32 {CNT}, 0
    s_mov_b32 {TMP2}, {WS_READY}
    """)
    g.label("L_rpoll")
    g(f"""
    buffer_load_dword v{vU+1}, v{vU}, {sWS}, {TMP2} offen sc1
    s_waitcnt vmcnt(0)
    v_cmp_ne_u32 vcc, {T}, v{vU+1}
    """)
    pollcheck("L_rdone", "L_rpoll")
    g.label("L_rdone")
    g(f"""
    v_and_b32 v{vU}, 7, v{vL}
    v_cmp_gt_u32 s[4:5], 6, v{vU}
    v_min_u32 v{vU}, 5, v{vU}
    v_bfe_u32 v{vU+1}, v{vL}, 3, 2
    v_mad_u32_u24 v{vU+2}, v{vU+1}, 6, v{vU}
    v_lshlrev_b32 v{vU+2}, 7, v{vU+2}
    v_bfe_u32 v{vU+1}, v{vL}, 3, 1
    v_mad_u32_u24 v{vU+3}, v{vU+1}, 6, v{vU}
    v_lshlrev_b32 v{vU+3}, 10, v{vU+3}
    v_lshl_add_u32 v{vU+3}, v{vT0}, 4, v{vU+3}
    s_mul_i32 {TMP2}, {X}, {24*128}
    s_lshr_b32 {TMP3}, {W}, 1
    s_lshl_b32 {TMP3}, {TMP3}, 3
    s_add_u32 {TMP2}, {TMP2}, {TMP3}
    s_add_u32 {TMP2}, {TMP2}, {WS_ST}
    s_mov_b32 {CNT}, 0
    """)
    g.label("L_spoll")
    g(f"""
    buffer_load_dwordx2 {r2(vU+4)}, v{vU+2}, {sWS}, {TMP2} offen sc1
    s_waitcnt vmcnt(0)
    v_max_u32 v{vU+6}, v{vU+4}, v{vU+5}
    v_cmp_eq_u32 vcc, -1, v{vU+6}
    """)
    pollcheck("L_sok", "L_spoll")
    g.label("L_sok")
    g.stamp(4)
    g(f"""
    s_mul_i32 {TMP2}, {X}, {24*1024}
    s_lshl_b32 {TMP3}, {W}, 7
    s_add_u32 {TMP2}, {TMP2}, {TMP3}
    s_add_u32 {TMP2}, {TMP2}, {WS_OP}
    s_add_u32 {TMP3}, {TMP2}, {12*1024}
    """)
    def op_loads():
        g(f"""
        buffer_load_dwordx4 {r4(vA)}, v{vU+3}, {sWS}, {TMP2} offen sc1
        buffer_load_dwordx4 {r4(vA+4)}, v{vU+3}, {sWS}, {TMP2} offen offset:64 sc1
        buffer_load_dwordx4 {r4(vA+8)}, v{vU+3}, {sWS}, {TMP3} offen sc1
        buffer_load_dwordx4 {r4(vA+12)}, v{vU+3}, {sWS}, {TMP3} offen offset:64 sc1
        """)
    op_loads()
    def red8(dst, op):
        for ctl in ("quad_perm:[1,0,3,2]", "quad_perm:[2,3,0,1]", "row_half_mirror"):
            g(f"s_nop 1\n{op}_dpp v{dst}, v{dst}, v{dst} {ctl} {DPPF}")
    g(f"v_mov_b32 v{vU+6}, v{vU+4}")
    red8(vU+6, "v_max_f32")
    g(f"""
    v_sub_f32 v{vU+6}, v{vU+4}, v{vU+6}
    v_exp_f32 v{vU+6}, v{vU+6}
    s_nop 0
    v_cndmask_b32 v{vU+6}, 0, v{vU+6}, s[4:5]
    v_mul_f32 v{vU+7}, v{vU+6}, v{vU+5}
    """)
    red8(vU+7, "v_add_f32")
    g(f"""
    v_rcp_f32 v{vU+7}, v{vU+7}
    s_lshl_b32 {TMP}, {W}, 7
    s_add_u32 {TMP}, {TMP}, {L_WT}
    v_mul_f32 v{vU+6}, v{vU+6}, v{vU+7}
    v_and_b32 v{vU+8}, 31, v{vL}
    v_lshl_add_u32 v{vU+8}, v{vU+8}, 2, {TMP}
    v_lshl_add_u32 v{vU+9}, v{vT0}, 4, {TMP}
    ds_write_b32 v{vU+8}, v{vU+6}
    s_waitcnt lgkmcnt(0)
    ds_read_b128 {r4(vWT)}, v{vU+9}
    ds_read_b128 {r4(vWT+4)}, v{vU+9} offset:64
    """)
    g(f"""
    v_lshrrev_b32 v{vU+8}, 1, v{vT0}
    v_lshl_add_u32 v{vU+8}, v{vU+8}, 6, v{vT3}
    v_mul_u32_u24 v{vU+8}, 80, v{vU+8}
    v_and_b32 v{vU+9}, 1, v{vT0}
    v_lshl_add_u32 v{vU+8}, v{vU+9}, 2, v{vU+8}
    s_lshl_b32 {TMP}, {W}, 3
    s_add_u32 {TMP}, {TMP}, {L_R}
    v_add_u32 v{vU+8}, {TMP}, v{vU+8}
    v_mul_u32_u24 v{vU+9}, 80, v0
    v_lshlrev_b32 v{vU+10}, 2, v{vL}
    s_mov_b32 {CNT}, 0
    s_branch L_ochk
    """)
    g.label("L_opoll")
    op_loads()
    g.label("L_ochk")
    g("s_waitcnt vmcnt(0)")
    sentinel_check(vA, 16, vU+11)
    pollcheck("L_ook", "L_opoll")
    g.label("L_ook")
    g.stamp(5)
    g("s_waitcnt lgkmcnt(0)")
    seq = [(t, nt) for t in range(2) for nt in range(4)]
    def o_mfma(i):
        t, nt = seq[i]; d = vD2 + 4*i
        g(f"v_mfma_f32_16x16x32_bf16 {r4(d)}, {r4(vA+8*t)}, {r4(vWO+4*nt)}, 0")
        g(f"v_mfma_f32_16x16x32_bf16 {r4(d)}, {r4(vA+8*t+4)}, {r4(vWO+16+4*nt)}, {r4(d)}")
    def o_post(i):
        t, nt = seq[i]; d = vD2 + 4*i
        g(f"v_pk_mul_f32 {r2(d)}, {r2(d)}, {r2(vWT+4*t)}")
        g(f"v_pk_fma_f32 {r2(d)}, {r2(d+2)}, {r2(vWT+4*t+2)}, {r2(d)}")
        g(f"v_add_f32 v{d}, v{d}, v{d+1}")
        g(f"ds_write_b32 v{vU+8}, v{d} offset:{(t*128+nt*16)*80}")
    o_mfma(0); o_mfma(1); o_mfma(2)
    g("s_nop 1")
    for i in range(8):
        if i + 3 < 8: o_mfma(i+3)
        else: g("s_nop 1")
        o_post(i)
    g(f"""
    s_lshl_b32 {TMP2}, {X}, 13
    s_lshl_b32 {TMP}, {W}, 11
    s_add_u32 {TMP2}, {TMP2}, {TMP}
    s_lshl_b32 {TMP}, {NS}, 8
    s_add_u32 {TMP2}, {TMP2}, {TMP}
    s_add_u32 {TMP2}, {TMP2}, {WS_AP}
    s_waitcnt lgkmcnt(0)
    s_barrier
    s_cmp_ge_u32 {W}, 4
    s_cbranch_scc1 L_h2
    """)
    for i in range(4): g(f"ds_read_b128 {r4(vP+4*i)}, v{vU+9} offset:{L_R+16*i}")
    g("s_waitcnt lgkmcnt(0)")
    g(f"""
    v_pk_add_f32 {r2(vP)}, {r2(vP)}, {r2(vP+2)}
    v_pk_add_f32 {r2(vP+4)}, {r2(vP+4)}, {r2(vP+6)}
    v_pk_add_f32 {r2(vP+8)}, {r2(vP+8)}, {r2(vP+10)}
    v_pk_add_f32 {r2(vP+12)}, {r2(vP+12)}, {r2(vP+14)}
    v_pk_add_f32 {r2(vP)}, {r2(vP)}, {r2(vP+4)}
    v_pk_add_f32 {r2(vP+8)}, {r2(vP+8)}, {r2(vP+12)}
    v_pk_add_f32 {r2(vP)}, {r2(vP)}, {r2(vP+8)}
    v_add_f32 v{vP}, v{vP}, v{vP+1}
    buffer_store_dword v{vP}, v{vU+10}, {sWS}, {TMP2} offen sc1
    """)
    g.label("L_h2")
    g.stamp(6)
    g(f"""
    s_cmp_eq_u32 {NS}, 7
    s_cbranch_scc1 L_final
    """)
    g(f"""
    v_lshlrev_b32 v{vU}, 11, v{vT0}
    v_lshl_add_u32 v{vU}, v{vT3}, 4, v{vU}
    s_lshl_b32 {TMP2}, {W}, 8
    s_add_u32 {TMP2}, {TMP2}, {WS_AP}
    s_mul_i32 {TMP}, {W}, 768
    s_add_u32 {TMP}, {TMP}, {L_HT}
    v_mul_u32_u24 v{vU+1}, 144, v{vT0}
    v_lshl_add_u32 v{vU+1}, v{vT3}, 3, v{vU+1}
    v_add_u32 v{vU+1}, {TMP}, v{vU+1}
    v_min_u32 v{vU+2}, 4, v{vT3}
    v_mul_u32_u24 v{vU+2}, 144, v{vU+2}
    v_lshl_add_u32 v{vU+2}, v{vT0}, 4, v{vU+2}
    v_add_u32 v{vU+2}, {TMP}, v{vU+2}
    s_mov_b32 {CNT}, 0
    s_barrier
    """)
    g.label("L_apoll")
    for xx in range(8):
        if xx: g(f"s_add_u32 {TMP3}, {TMP2}, {8192*xx}")
        g(f"buffer_load_dwordx4 {r4(vP+4*xx)}, v{vU}, {sWS}, {TMP3 if xx else TMP2} offen sc1")
    g("s_waitcnt vmcnt(0)")
    sentinel_check(vP, 32, vU+11)
    pollcheck("L_aok", "L_apoll")
    g.label("L_aok")
    g.stamp(7)
    for st in (4, 8, 16):
        for i in range(0, 32, 2*st):
            g(f"v_pk_add_f32 {r2(vP+i)}, {r2(vP+i)}, {r2(vP+i+st)}")
            g(f"v_pk_add_f32 {r2(vP+i+2)}, {r2(vP+i+2)}, {r2(vP+i+st+2)}")
    g(f"""
    v_pk_add_f32 {r2(vP)}, {r2(vP)}, {r2(vXF+4)}
    v_pk_add_f32 {r2(vP+2)}, {r2(vP+2)}, {r2(vXF+6)}
    v_cvt_pk_bf16_f32 v{vP+4}, v{vP}, v{vP+1}
    v_cvt_pk_bf16_f32 v{vP+5}, v{vP+2}, v{vP+3}
    ds_write_b64 v{vU+1}, {r2(vP+4)}
    s_waitcnt lgkmcnt(0)
    ds_read_b128 {r4(vA)}, v{vU+2}
    ds_read_b128 {r4(vA+4)}, v{vU+2} offset:64
    """)
    g(f"""
    v_bfe_u32 v{vU+3}, v0, 4, 1
    v_lshlrev_b32 v{vU+3}, 11, v{vU+3}
    v_lshl_add_u32 v{vU+3}, v{vT3}, 4, v{vU+3}
    v_add_u32 v{vU+3}, {L_R}, v{vU+3}
    v_bfe_u32 v{vU+4}, v0, 5, 2
    v_lshl_add_u32 v{vU+5}, v{vU+4}, 2, v{vU+3}
    v_mul_u32_u24 v{vU+6}, 20, v{vU+4}
    v_add_u32 v{vU+6}, {L_R+8192}, v{vU+6}
    v_lshlrev_b32 v{vU+7}, 2, v{vU+4}
    v_add_u32 v{vU+7}, {L_R+8192+64}, v{vU+7}
    s_waitcnt lgkmcnt(0)
    """)
    for kt in range(2):
        for nt in range(4):
            g(f"v_mfma_f32_16x16x32_bf16 {r4(vD2+4*nt)}, {r4(vA+4*kt)}, {r4(vGU+16*kt+4*nt)}, {'0' if kt == 0 else r4(vD2+4*nt)}")
        g(f"v_mfma_f32_16x16x32_bf16 {r4(vD2+16)}, {r4(vA+4*kt)}, {r4(vA+4*kt)}, {'0' if kt == 0 else r4(vD2+16)}")
    g(f"""
    v_mul_u32_u24 v{vU+8}, 80, v{vU+4}
    v_and_b32 v{vU+9}, 31, v0
    v_lshl_add_u32 v{vU+8}, v{vU+9}, 1, v{vU+8}
    s_mov_b32 exec_hi, 0
    """)
    for t in range(5):
        g(f"ds_write_b128 v{vRW}, {r4(vD2+4*t)} offset:{2048*t}")
        if t == 3: g("s_nop 0")
    g(f"""
    s_mov_b32 exec_hi, -1
    v_mul_u32_u24 v{vU+9}, 80, v{vT2}
    v_lshl_add_u32 v{vU+9}, v{vT0}, 4, v{vU+9}
    v_mov_b32 v{vU+10}, 320
    """)
    for t in range(4):
        g(f"v_cmp_eq_u32 vcc, {t}, v{vT1}\ns_nop 1\nv_cndmask_b32 v{vCS+t}, v{vU+10}, v{vU+9}, vcc")
    g(f"""
    s_waitcnt lgkmcnt(0)
    s_barrier
    s_cmp_ge_u32 {W}, 2
    s_cbranch_scc1 L_act_done
    """)
    read8(vP+16, vU+7, 0); read8(vP+24, vU+6, 0)
    read8(vP, vU+5, 0); read8(vP+8, vU+5, 16); read8(vP+32, vU+3, 40); read8(vP+40, vU+3, 56)
    g("s_waitcnt lgkmcnt(0)")
    sum8([vP+16, vP+24, vP, vP+8, vP+32, vP+40])
    Gv, Uv, S1, S2, CG, CU = vP, vP+8, vP+16, vP+24, vP+32, vP+40
    ln_stats(S1, S2)
    g(f"""
    v_fma_f32 v{Gv}, -v{S1}, v{CG}, v{Gv}
    v_fma_f32 v{Uv}, -v{S1}, v{CU}, v{Uv}
    v_mul_f32 v{Gv}, v{Gv}, v{S2}
    v_mul_f32 v{Uv}, v{Uv}, v{S2}
    v_mul_f32 v{CG}, {f2u(-math.log2(math.e)):#x}, v{Gv}
    v_exp_f32 v{CG}, v{CG}
    v_mul_f32 v{Uv}, v{Uv}, v{Gv}
    v_add_f32 v{CG}, 1.0, v{CG}
    v_rcp_f32 v{CG}, v{CG}
    s_nop 0
    v_mul_f32 v{Uv}, v{Uv}, v{CG}
    v_cvt_pk_bf16_f32 v{Uv}, v{Uv}, v{Uv}
    ds_write_b16 v{vU+8}, v{Uv} offset:{L_ACT}
    s_waitcnt lgkmcnt(0)
    """)
    g.label("L_act_done")
    g("s_barrier")
    g.stamp(8)
    for t in range(4): g(f"ds_read_b128 {r4(vA+4*t)}, v{vCS+t} offset:{L_ACT}")
    g(f"""
    v_lshlrev_b32 v{vU}, 11, v{vT2}
    v_lshl_add_u32 v{vU}, v{vT1}, 6, v{vU}
    v_lshl_add_u32 v{vU}, v{vT0}, 4, v{vU}
    s_lshl_b32 {TMP2}, {JF}, 13
    s_lshl_b32 {TMP}, {W}, 8
    s_add_u32 {TMP2}, {TMP2}, {TMP}
    s_add_u32 {TMP2}, {TMP2}, {WS_DP}
    s_waitcnt lgkmcnt(0)
    """)
    for t in range(4):
        g(f"v_mfma_f32_16x16x32_bf16 {r4(vD2)}, {r4(vWD+4*t)}, {r4(vA+4*t)}, {'0' if t == 0 else r4(vD2)}")
    g(f"""
    s_nop 7
    buffer_store_dwordx4 {r4(vD2)}, v{vU}, {sWS}, {TMP2} offen sc1
    """)
    g.stamp(9)
    g("s_branch L_fin")
    g.label("L_final")
    srd(32, 66, 4096)
    g(f"""
    s_lshl_b32 {JF}, {X}, 3
    s_add_u32 {JF}, {JF}, {W}
    v_lshrrev_b32 v{vU}, 3, v{vL}
    v_lshlrev_b32 v{vU}, 13, v{vU}
    v_and_b32 v{vU+1}, 7, v{vL}
    v_lshl_add_u32 v{vU}, v{vU+1}, 4, v{vU}
    s_lshl_b32 {TMP}, {JF}, 7
    s_add_u32 {TMP2}, {TMP}, {WS_AP}
    """)
    g(f"""
    v_lshrrev_b32 v{vU+2}, 5, v{vL}
    v_bfe_u32 v{vU+3}, v{vL}, 4, 1
    v_lshl_add_u32 v{vU+2}, v{vU+3}, 1, v{vU+2}
    v_lshl_add_u32 v{vU+2}, v{vU+1}, 2, v{vU+2}
    v_lshlrev_b32 v{vU+2}, 1, v{vU+2}
    s_lshl_b32 {TMP3}, {JF}, 6
    buffer_load_ushort v{vU+4}, v{vU+2}, {sXS}, {TMP3} offen
    s_mov_b32 {CNT}, 0
    """)
    g.label("L_hpoll")
    g(f"buffer_load_dwordx4 {r4(vP+28)}, v{vU}, {sWS}, {TMP2} offen sc1")
    g("s_waitcnt vmcnt(0)")
    sentinel_check(vP+28, 4, vU+11)
    pollcheck("L_hok", "L_hpoll")
    g.label("L_hok")
    g.stamp(7)
    g(f"""
    v_lshlrev_b32 v{vU+4}, 16, v{vU+4}
    s_add_u32 {TMP2}, {TMP}, {WS_DP}
    s_mov_b32 {CNT}, 0
    """)
    g.label("L_dpoll")
    for i in range(7):
        if i: g(f"s_add_u32 {TMP}, {TMP2}, {65536*i}")
        g(f"buffer_load_dwordx4 {r4(vP+4*i)}, v{vU}, {sWS}, {TMP if i else TMP2} offen sc1")
    g("s_waitcnt vmcnt(0)")
    sentinel_check(vP, 28, vU+11)
    pollcheck("L_dok", "L_dpoll")
    g.label("L_dok")
    g.stamp(8)
    for st in (4, 8, 16):
        for i in range(0, 32, 2*st):
            g(f"v_pk_add_f32 {r2(vP+i)}, {r2(vP+i)}, {r2(vP+i+st)}")
            g(f"v_pk_add_f32 {r2(vP+i+2)}, {r2(vP+i+2)}, {r2(vP+i+st+2)}")
    g(f"""
    s_nop 1
    v_permlane32_swap_b32 v{vP}, v{vP+1}
    v_permlane32_swap_b32 v{vP+2}, v{vP+3}
    s_nop 1
    v_add_f32 v{vP}, v{vP}, v{vP+1}
    v_add_f32 v{vP+2}, v{vP+2}, v{vP+3}
    s_nop 1
    v_permlane16_swap_b32 v{vP}, v{vP+2}
    s_nop 1
    v_add_f32 v{vP}, v{vP}, v{vP+2}
    s_nop 1
    v_add_f32_dpp v{vP}, v{vP}, v{vP} row_ror:8 {DPPF}
    v_add_f32 v{vP}, v{vP}, v{vU+4}
    v_cvt_pk_bf16_f32 v{vP}, v{vP}, v{vP}
    s_mov_b32 exec_lo, 0x00ff00ff
    s_mov_b32 exec_hi, 0x00ff00ff
    buffer_store_short v{vP}, v{vU+2}, {sOUT}, {TMP3} offen
    s_mov_b64 exec, 1
    s_cmp_lg_u32 {JF}, 0
    s_cselect_b32 {TMP2}, 0x40000000, {WS_EPOCH}
    v_mov_b32 v{vP+1}, {T}
    v_mov_b32 v{vP+2}, 0
    buffer_store_dword v{vP+1}, v{vP+2}, {sWS}, {TMP2} offen
    s_mov_b64 exec, -1
    """)
    g.stamp(9)
    g("s_branch L_fin")

    NVGPR = 248
    hdr = open("sequential_preLN__gqa_block_cached__swiglu_ffn__decode.s.ref").read().split("; Override launch")[0]
    return hdr + f"""; @launch grid=(256,1,1) block=(512,1,1) lds={LDS_BYTES}
.amdgcn_target "amdgcn-amd-amdhsa--gfx950"
.text
.globl {KN}
.p2align 8
.type {KN},@function
{KN}:
""" + g.text() + f"""
.section .rodata,"a"
.p2align 6
.amdhsa_kernel {KN}
  .amdhsa_next_free_vgpr {NVGPR}
  .amdhsa_next_free_sgpr 102
  .amdhsa_accum_offset {NVGPR}
  .amdhsa_group_segment_fixed_size 0
  .amdhsa_kernarg_size 96
  .amdhsa_user_sgpr_count 2
  .amdhsa_user_sgpr_kernarg_segment_ptr 1
  .amdhsa_system_sgpr_workgroup_id_x 1
.end_amdhsa_kernel
"""

if __name__ == "__main__":
    open("v2.s", "w").write(build(False))
    open("v2s.s", "w").write(build(True))
    open("v2d.s", "w").write(build(True, dbg=True))
    print("LDS", LDS_BYTES)
```
